```python
import torch

def _softmax(x, axis=-1):
    return torch.softmax(x, dim=axis)
def _gelu(x):
    return torch.nn.functional.gelu(x, approximate="tanh")
def _silu(x):
    return torch.nn.functional.silu(x)
def _sigmoid(x):
    return torch.sigmoid(x)
def _layernorm(x, axis=-1, eps=1e-5):
    m = x.mean(dim=axis, keepdim=True)
    v = x.var(dim=axis, keepdim=True, unbiased=False)
    return (x - m) / torch.sqrt(v + eps)
def _scatter_add(tgt, idx, src, axis=0):
    return tgt.clone().index_add_(axis, idx, src)
def _segment_sum(src, seg, n):
    out = torch.zeros((n,) + src.shape[1:], dtype=src.dtype)
    return out.index_add_(0, seg, src)
def _pad(x, pw):
    flat = tuple(v for pair in reversed(pw) for v in pair)
    return torch.nn.functional.pad(x, flat)

kernel_name = 'parallel_sum__grouped_kv_mqa__mixer_channel_mlp__prompt'

def setup_inputs():

    _w = (lambda a: (lambda t: t.to(torch.bfloat16) if t.is_floating_point() else t)(torch.as_tensor(a)))
    def _A_setup():
        B, S, D, H = 1, 2048, 1024, 32
        Dh = D // H
        return {
            "x": _w((lambda *s: torch.randn(*s, dtype=torch.bfloat16) * 0.05)(B, S, D)),
            "wq": _w((lambda *s: torch.randn(*s, dtype=torch.bfloat16) * 0.05)(D, H * Dh)),
            "wk": _w((lambda *s: torch.randn(*s, dtype=torch.bfloat16) * 0.05)(D, Dh)),
            "wv": _w((lambda *s: torch.randn(*s, dtype=torch.bfloat16) * 0.05)(D, Dh)),
            "wo": _w((lambda *s: torch.randn(*s, dtype=torch.bfloat16) * 0.05)(H * Dh, D)),
        }
    _A_in = _A_setup()

    def _B_setup():
        B, S, D, F = 1, 2048, 1024, 3584
        return {
            "x": _w((lambda *s: torch.randn(*s, dtype=torch.bfloat16) * 0.05)(B, S, D)),
            "w1": _w((lambda *s: torch.randn(*s, dtype=torch.bfloat16) * 3.2)(D, F) * (D ** -0.5)),
            "b1": _w((lambda *s: torch.randn(*s, dtype=torch.bfloat16) * 1.6)(F)),
            "w2": _w((lambda *s: torch.randn(*s, dtype=torch.bfloat16) * 0.4)(F, D) * (F ** -0.5)),
            "b2": _w((lambda *s: torch.randn(*s, dtype=torch.bfloat16) * 0.8)(D)),
        }
    _B_in = _B_setup()

    return {
        "A_x": _A_in["x"],
        "A_wq": _A_in["wq"],
        "A_wk": _A_in["wk"],
        "A_wv": _A_in["wv"],
        "A_wo": _A_in["wo"],
        "B_x": _B_in["x"],
        "B_w1": _B_in["w1"],
        "B_b1": _B_in["b1"],
        "B_w2": _B_in["w2"],
        "B_b2": _B_in["b2"],
    }

def reference(A_x, A_wq, A_wk, A_wv, A_wo, B_x, B_w1, B_b1, B_w2, B_b2):
    def _A_ref(x, wq, wk, wv, wo):
        B, S, D = x.shape
        H = 32
        Dh = D // H
        q = (lambda x, *d: x.permute(*d))((x @ wq).reshape(B, S, H, Dh), 0, 2, 1, 3)
        k = x @ wk
        v = x @ wv
        scores = torch.einsum("bhqd,bkd->bhqk", q, k) * (Dh ** -0.5)
        p = _softmax(scores, axis=-1)
        o = torch.einsum("bhqk,bkd->bhqd", p, v)
        return (lambda x, *d: x.permute(*d))(o, 0, 2, 1, 3).reshape(B, S, H * Dh) @ wo

    def _B_ref(x, w1, b1, w2, b2):
        y = _layernorm(x, axis=-1)
        h = _gelu(torch.einsum("bsd,df->bsf", y, w1) + b1)
        return torch.einsum("bsf,fd->bsd", h, w2) + b2

    x = A_x
    xn = _layernorm(x, axis=-1)
    return x + _A_ref(xn, A_wq, A_wk, A_wv, A_wo) + _B_ref(xn, B_w1, B_b1, B_w2, B_b2)
```

```python
class Asm:
    def __init__(self):
        self.lines = []
        self.nlabel = 0
    def __call__(self, s):
        for ln in s.split("\n"):
            ln = ln.strip()
            if ln:
                self.lines.append(("" if ln.endswith(":") else "  ") + ln)
    def label(self, name):
        self.lines.append(f"{name}:")
    def newlabel(self, stem):
        self.nlabel += 1
        return f"L_{stem}_{self.nlabel}"
    def comment(self, s):
        self.lines.append(f"  ; {s}")
    def text(self):
        return "\n".join(self.lines)

def v(a, n=1):
    return f"v{a}" if n == 1 else f"v[{a}:{a+n-1}]"
def s(a, n=1):
    return f"s{a}" if n == 1 else f"s[{a}:{a+n-1}]"

import struct
def f32(x):
    return "0x%08x" % struct.unpack("<I", struct.pack("<f", x))[0]

class Q:
    def __init__(self, name, maxn):
        self.name, self.maxn = name, maxn
        self.issued = []
        self.done = 0
    def issue(self, tag):
        self.issued.append(tag)
    def need(self, tags):
        idx = -1
        for t in tags:
            for i in range(len(self.issued) - 1, -1, -1):
                if self.issued[i] == t:
                    idx = max(idx, i)
                    break
        if idx < self.done:
            return None
        n = len(self.issued) - 1 - idx
        n = min(n, self.maxn)
        self.done = len(self.issued) - n
        return n
    def drain(self):
        self.done = len(self.issued)


class Stamps:
    def __init__(self, on, base=76, kidx=0):
        self.on, self.base, self.kidx = on, base, kidx
    def mark(self, a, i):
        if not self.on: return
        b = self.base
        a(f"s_memtime s[{b}:{b+1}]")
        a(f"s_memrealtime s[{b+2}:{b+3}]")
        a("s_waitcnt lgkmcnt(0)")
        a(f"s_mov_b32 s{b+4+2*i}, s{b}")
        a(f"s_mov_b32 s{b+5+2*i}, s{b+2}")
    def flush(self, a, n, srd, swave, st_off, vt=2):
        if not self.on: return
        a("s_waitcnt vmcnt(0) lgkmcnt(0)")
        self.mark(a, n)
        a(f"s_lshl_b32 s3, s2, 3")
        a(f"s_add_u32 s3, s3, s{swave}")
        a(f"s_lshl_b32 s3, s3, 6")
        a(f"s_add_u32 s3, s3, {st_off + self.kidx * 256 * 8 * 64}")
        a(f"v_mov_b32 v{vt}, 0")
        for i in range(2 * n + 2):
            a(f"v_mov_b32 v{vt+1}, s{self.base + 4 + i}")
            a(f"buffer_store_dword v{vt+1}, v{vt}, s[{srd}:{srd+3}], s3 offen offset:{i*4}")
            a("s_nop 1")
```

```python
import math
from asmlib import *
from layout import *

LDS_A = 0
LDS_B = 98304
LDS_M = 159744
SLOT_B = 20480
QSCALE = (32 ** -0.5) * math.log2(math.e)
G_C0 = -2.0 * math.sqrt(2.0 / math.pi) * math.log2(math.e)
G_C1 = G_C0 * 0.044715

SX, SB, SS, SW, SB1, SD = 24, 28, 32, 36, 40, 44
sMT, sCW, sFLIP, sCBM, sCBS, sLDW, sLDS, sWAVE, sTYPE = 48, 49, 50, 51, 52, 53, 54, 55, 56
sT0, sT1, sT2, sT3, sT4, sT5 = 57, 58, 59, 60, 61, 62
sPH, sKT, sSA, sSB, sOA, sOB, sOS, sSTB, sSTS = 63, 64, 65, 66, 67, 68, 69, 70, 71

def srd(a, base, ptr, size):
    a(f"s_mov_b32 s{base}, s{ptr}")
    a(f"s_mov_b32 s{base+1}, s{ptr+1}")
    a(f"s_mov_b32 s{base+2}, {size}")
    a(f"s_mov_b32 s{base+3}, 0x20000")

ST = Stamps(False)
def gen_k2(name, stflag="sc1", stamps=False):
    global ST
    ST = Stamps(stamps, 76, 0)
    a = Asm()
    a(f".globl {name}\n.p2align 8\n.type {name},@function")
    a.label(name)
    a("s_cmp_ge_u32 s2, 256")
    a(f"s_cbranch_scc1 {name}_exit")
    ST.mark(a, 0)
    a("s_load_dwordx8 s[8:15], s[0:1], 0")
    a("s_load_dwordx4 s[16:19], s[0:1], 48")
    a("s_load_dwordx4 s[20:23], s[0:1], 88")
    a("v_lshrrev_b32 v1, 6, v0")
    a("v_and_b32 v0, 63, v0")
    a(f"v_readfirstlane_b32 s{sWAVE}, v1")
    a(f"s_and_b32 s{sT0}, s2, 7")
    a(f"s_lshr_b32 s{sT1}, s2, 3")
    a(f"s_and_b32 s{sMT}, s{sT0}, 1")
    a(f"s_lshl_b32 s{sMT}, s{sMT}, 2")
    a(f"s_and_b32 s{sT2}, s{sT1}, 3")
    a(f"s_add_u32 s{sMT}, s{sMT}, s{sT2}")
    a(f"s_lshr_b32 s{sCW}, s{sT0}, 1")
    a(f"s_lshl_b32 s{sCW}, s{sCW}, 3")
    a(f"s_lshr_b32 s{sT2}, s{sT1}, 2")
    a(f"s_add_u32 s{sCW}, s{sCW}, s{sT2}")
    a(f"s_lshr_b32 s{sT0}, s{sCW}, 2")
    a(f"s_and_b32 s{sT1}, s{sCW}, 3")
    a(f"s_mul_i32 s{sT0}, s{sT0}, 18")
    a(f"s_lshl_b32 s{sCBM}, s{sT1}, 2")
    a(f"s_add_u32 s{sCBM}, s{sCBM}, s{sT0}")
    a(f"s_lshr_b32 s{sCBS}, s{sT1}, 1")
    a(f"s_add_u32 s{sCBS}, s{sCBS}, s{sT0}")
    a(f"s_add_u32 s{sCBS}, s{sCBS}, 16")
    a(f"s_and_b32 s{sFLIP}, s{sT1}, 1")
    a(f"s_mov_b32 s{sTYPE}, 0")
    a(f"s_mov_b32 s{sLDW}, 7168")
    a(f"s_mov_b32 s{sLDS}, 7168")
    a("s_waitcnt lgkmcnt(0)")
    srd(a, SX, 8, 4194304)
    srd(a, SB, 16, 7340032)
    srd(a, SS, 16, 7340032)
    srd(a, SW, 22, WS_USED)
    srd(a, SB1, 18, 7168)
    srd(a, SD, 20, 256)
    a(f"s_cmp_lt_u32 s{sCW}, 24")
    a(f"s_cbranch_scc1 {name}_dec")
    a(f"s_mov_b32 s{sFLIP}, 0")
    a(f"s_cmp_eq_u32 s{sCW}, 31")
    a(f"s_cbranch_scc0 {name}_nh4")
    a(f"s_mov_b32 s{sCBM}, 108")
    a(f"s_mov_b32 s{sCBS}, 108")
    a(f"s_branch {name}_dec")
    a.label(f"{name}_nh4")
    a(f"s_sub_u32 s{sT0}, s{sCW}, 24")
    a(f"s_lshl_b32 s{sCBM}, s{sT0}, 2")
    a(f"s_mov_b32 s{sCBS}, s{sCW}")
    a(f"s_mov_b32 s{sTYPE}, 1")
    a(f"s_mov_b32 s{sLDW}, 2048")
    a(f"s_mov_b32 s{sLDS}, 2048")
    a(f"s_mov_b32 s{SB}, s10\ns_mov_b32 s{SB+1}, s11\ns_mov_b32 s{SB+2}, 2097152")
    a(f"s_mov_b32 s{SS}, s10\ns_mov_b32 s{SS+1}, s11\ns_mov_b32 s{SS+2}, 2097152")
    a(f"s_cmp_eq_u32 s{sCW}, 30")
    a(f"s_cbranch_scc0 {name}_dec")
    a(f"s_mov_b32 s{sTYPE}, 2")
    a(f"s_mov_b32 s{sCBM}, 30")
    a(f"s_mov_b32 s{sCBS}, 0")
    a(f"s_mov_b32 s{sLDS}, 64")
    a(f"s_mov_b32 s{SS}, s12\ns_mov_b32 s{SS+1}, s13\ns_mov_b32 s{SS+2}, 65536")
    a(f"s_cmp_ge_u32 s{sWAVE}, 6")
    a(f"s_cbranch_scc0 {name}_dec")
    a(f"s_mov_b32 s{sLDW}, 64")
    a(f"s_mov_b32 s{SB}, s14\ns_mov_b32 s{SB+1}, s15\ns_mov_b32 s{SB+2}, 65536")
    a.label(f"{name}_dec")
    a(f"s_cmp_ge_u32 s{sWAVE}, 4")
    a(f"s_cbranch_scc1 {name}_loader")
    gen_compute(a, name, stflag)
    a.label(f"{name}_loader")
    gen_loader(a, name)
    a.label(f"{name}_exit")
    a("s_endpgm")
    return a.text()

def gen_loader(a, name):
    vA = 2
    vB = 10
    vS = 14
    vC = 16
    vCA = 26
    vD = 32
    t0, t1, t2, t3 = 96, 97, 98, 99
    LW = sT5
    a(f"s_sub_u32 s{LW}, s{sWAVE}, 4")
    a(f"v_lshrrev_b32 v{t0}, 3, v0")
    a(f"v_and_b32 v{t1}, 7, v0")
    a(f"v_lshrrev_b32 v{t2}, 4, v0")
    a(f"v_xor_b32 v{t1}, v{t1}, v{t2}")
    a(f"v_lshlrev_b32 v{t0}, 11, v{t0}")
    a(f"v_lshl_add_u32 v{t3}, v{t1}, 4, v{t0}")
    a(f"s_lshl_b32 s{sT0}, s{sMT}, 8")
    a(f"s_lshl_b32 s{sT1}, s{LW}, 6")
    a(f"s_add_u32 s{sT0}, s{sT0}, s{sT1}")
    a(f"s_lshl_b32 s{sT0}, s{sT0}, 11")
    a(f"s_lshl_b32 s{sT1}, s{sFLIP}, 16")
    for q in range(8):
        a(f"s_xor_b32 s{sT2}, s{sT1}, {q*16384}")
        a(f"s_add_u32 s{sT2}, s{sT2}, s{sT0}")
        a(f"s_sub_u32 s{sT2}, s{sT2}, {(q%4)*1024}")
        if q % 2 == 0:
            a(f"v_add_u32 v{vA+q}, s{sT2}, v{t3}")
        else:
            a(f"v_xor_b32 v{vA+q}, 64, v{t3}")
            a(f"v_add_u32 v{vA+q}, s{sT2}, v{vA+q}")
    a(f"v_lshrrev_b32 v{t0}, 3, v0")
    a(f"v_mul_lo_u32 v{t0}, v{t0}, s{sLDW}")
    a(f"v_and_b32 v{t1}, 7, v0")
    a(f"v_bfe_u32 v{t2}, v0, 4, 1")
    a(f"v_lshlrev_b32 v{t2}, 2, v{t2}")
    a(f"v_xor_b32 v{t1}, v{t1}, v{t2}")
    a(f"v_lshl_add_u32 v{t3}, v{t1}, 4, v{t0}")
    a(f"s_and_b32 s{sT0}, s{LW}, 1")
    a(f"s_lshl_b32 s{sT0}, s{sT0}, 5")
    a(f"s_mul_i32 s{sT0}, s{sT0}, s{sLDW}")
    a(f"s_lshl_b32 s{sT1}, s{sCBM}, 6")
    a(f"s_add_u32 s{sT0}, s{sT0}, s{sT1}")
    a(f"s_lshr_b32 s{sT1}, s{LW}, 1")
    a(f"s_lshl_b32 s{sT1}, s{sT1}, 7")
    a(f"s_add_u32 s{sT0}, s{sT0}, s{sT1}")
    a(f"s_lshl_b32 s{sT1}, s{sLDW}, 3")
    a(f"s_sub_u32 s{sT1}, s{sT1}, 1024")
    for t in range(4):
        a(f"v_add_u32 v{vB+t}, s{sT0}, v{t3}")
        a(f"s_add_u32 s{sT0}, s{sT0}, s{sT1}")
    a(f"s_cmp_eq_u32 s{sLDW}, 64")
    a(f"s_cbranch_scc0 {name}_ld_nv")
    a(f"s_and_b32 s{sT0}, s{LW}, 1")
    a(f"s_lshl_b32 s{sT0}, s{sT0}, 12")
    a(f"v_lshlrev_b32 v{t0}, 4, v0")
    for t in range(4):
        a(f"v_add_u32 v{vB+t}, s{sT0}, v{t0}")
    a.label(f"{name}_ld_nv")
    a(f"v_lshrrev_b32 v{t0}, 2, v0")
    a(f"s_lshl_b32 s{sT0}, s{LW}, 4")
    a(f"v_add_u32 v{t0}, s{sT0}, v{t0}")
    a(f"v_mul_lo_u32 v{t0}, v{t0}, s{sLDS}")
    a(f"v_and_b32 v{t1}, 3, v0")
    a(f"v_lshl_add_u32 v{t0}, v{t1}, 4, v{t0}")
    a(f"s_lshl_b32 s{sT0}, s{sCBS}, 6")
    a(f"v_add_u32 v{vS}, s{sT0}, v{t0}")
    a(f"s_lshl_b32 s{sKT}, s{sMT}, 1")
    a(f"s_lshl_b32 s{sSTB}, s{sLDW}, 6")
    a(f"s_lshl_b32 s{sSTS}, s{sLDS}, 6")
    a(f"s_mul_i32 s{sSA}, s{LW}, 24576")
    a(f"s_lshl_b32 s{sSB}, s{LW}, 12")
    a(f"s_add_u32 s{sSB}, s{sSB}, {LDS_B}")
    a(f"s_mul_i32 s{sT4}, s{LW}, 3072")
    a(f"s_sub_u32 s{sT4}, 16384, s{sT4}")
    a(f"s_mov_b32 s{sT3}, 0")

    def issue():
        a(f"s_lshl_b32 s{sOA}, s{sKT}, 7")
        a(f"s_mul_i32 s{sOB}, s{sKT}, s{sSTB}")
        a(f"s_mul_i32 s{sOS}, s{sKT}, s{sSTS}")
        a(f"s_mov_b32 m0, s{sSB}")
        a(f"s_add_u32 s{sKT}, s{sKT}, 1")
        for t in range(4):
            a(f"buffer_load_dwordx4 v{vB+t}, s[{SB}:{SB+3}], s{sOB} offen offset:{t*1024} lds")
        a(f"s_mov_b32 m0, s{sSA}")
        a(f"s_and_b32 s{sKT}, s{sKT}, 15")
        for q in range(4):
            a(f"buffer_load_dwordx4 v{vA+q}, s[{SX}:{SX+3}], s{sOA} offen offset:{q*1024} lds")
        a(f"s_add_u32 m0, s{sSA}, 4096")
        a(f"s_add_u32 s{sT3}, s{sT3}, 1")
        for q in range(4, 8):
            a(f"buffer_load_dwordx4 v{vA+q}, s[{SX}:{SX+3}], s{sOA} offen offset:{(q%4)*1024} lds")
        a(f"s_add_u32 m0, s{sSB}, s{sT4}")
        a(f"s_add_u32 s{sSA}, s{sSA}, 8192")
        a(f"buffer_load_dwordx4 v{vS}, s[{SS}:{SS+3}], s{sOS} offen lds")
        a(f"s_add_u32 s{sSB}, s{sSB}, {SLOT_B}")
        a(f"s_cmp_eq_u32 s{sT3}, 3")
        a(f"s_cselect_b32 s{sT0}, 24576, 0")
        a(f"s_cselect_b32 s{sT1}, {3*SLOT_B}, 0")
        a(f"s_cselect_b32 s{sT3}, 0, s{sT3}")
        a(f"s_sub_u32 s{sSA}, s{sSA}, s{sT0}")
        a(f"s_sub_u32 s{sSB}, s{sSB}, s{sT1}")

    a(f"s_mov_b32 s{sPH}, 0")
    a.label(f"{name}_ld_pro")
    issue()
    a(f"s_add_u32 s{sPH}, s{sPH}, 1")
    a(f"s_cmp_lt_u32 s{sPH}, 3")
    a(f"s_cbranch_scc1 {name}_ld_pro")
    g_, r_, c_, hf_ = 100, 101, 102, 103
    a(f"v_bfe_u32 v{g_}, v0, 4, 1")
    a(f"v_bfe_u32 v{r_}, v0, 2, 2")
    a(f"v_and_b32 v{c_}, 3, v0")
    a(f"v_lshrrev_b32 v{hf_}, 5, v0")
    a(f"v_lshlrev_b32 v{t0}, 5, v{g_}")
    a(f"v_lshl_add_u32 v{t0}, v{c_}, 3, v{t0}")
    a(f"v_lshl_add_u32 v{t1}, v{hf_}, 3, v{r_}")
    a(f"s_lshl_b32 s{sT0}, s{LW}, 4")
    a(f"v_add_u32 v{t1}, s{sT0}, v{t1}")
    a(f"v_lshrrev_b32 v{t2}, 1, v{r_}")
    a(f"v_lshlrev_b32 v{t2}, 6, v{t2}")
    a(f"v_xor_b32 v{t2}, v{t2}, v{t0}")
    a(f"v_lshl_add_u32 v{t2}, v{t1}, 7, v{t2}")
    a(f"v_lshl_add_u32 v{t3}, v{t1}, 6, v{t0}")
    for nb in range(4):
        for j in range(2):
            d = vC + nb * 2 + j
            if nb % 2 == 0:
                a(f"v_add_u32 v{d}, {LDS_B + (nb//2)*8192 + j*512}, v{t2}")
            else:
                a(f"v_xor_b32 v{d}, 64, v{t2}")
                a(f"v_add_u32 v{d}, {LDS_B + (nb//2)*8192 + j*512}, v{d}")
    for j in range(2):
        a(f"v_add_u32 v{vC+8+j}, {LDS_B + 16384 + j*256}, v{t3}")
    a(f"s_cmp_eq_u32 s{sTYPE}, 2")
    a(f"s_cbranch_scc0 {name}_ld_nv2")
    for j in range(2):
        a(f"v_add_u32 v{vC+4+j}, {LDS_B + 8192 + j*256}, v{t3}")
    a.label(f"{name}_ld_nv2")
    for i in range(5):
        a(f"v_mov_b32 v{vCA+i}, 0")
    a("s_waitcnt vmcnt(26)")
    a("s_barrier")

    def colsum(slot):
        for i in range(10):
            a(f"ds_read_b64_tr_b16 v[{vD+2*i}:{vD+2*i+1}], v{vC+i} offset:{slot*SLOT_B}")
        for i in range(10):
            a(f"s_waitcnt lgkmcnt({9-i})")
            for k in range(2):
                r = vD + 2 * i + k
                a(f"v_lshlrev_b32 v{t0}, 16, v{r}")
                a(f"v_and_b32 v{t1}, 0xffff0000, v{r}")
                a(f"v_add_f32 v{vCA+i//2}, v{vCA+i//2}, v{t0}")
                a(f"v_add_f32 v{vCA+i//2}, v{vCA+i//2}, v{t1}")
    def endphase(n=13):
        a(f"s_waitcnt vmcnt({n}) lgkmcnt(0)")
        a("s_barrier")

    colsum(0)
    endphase()
    vX = 64
    a(f"s_lshl_b32 s{sT0}, s{sMT}, 8")
    a(f"s_lshl_b32 s{sT1}, s{sCW}, 3")
    a(f"s_add_u32 s{sT0}, s{sT0}, s{sT1}")
    a(f"s_lshl_b32 s{sT1}, s{LW}, 1")
    a(f"s_add_u32 s{sT2}, s{sT0}, s{sT1}")
    a(f"v_add_u32 v{g_}, s{sT2}, v{hf_}")
    a(f"v_lshlrev_b32 v{t0}, 11, v{g_}")
    a(f"v_and_b32 v{t1}, 31, v0")
    a(f"v_lshl_add_u32 v{t0}, v{t1}, 4, v{t0}")
    for i in range(4):
        a(f"buffer_load_dwordx4 v[{vX+4*i}:{vX+4*i+3}], v{t0}, s[{SX}:{SX+3}], 0 offen offset:{i*512}")
    issue()
    colsum(1)
    for i in range(5):
        a(f"v_mov_b32 v{vD+i}, v{vCA+i}")
    a("s_nop 1")
    for i in range(5):
        a(f"v_permlane32_swap_b32 v{vCA+i}, v{vD+i}")
    a(f"v_and_b32 v{t1}, 31, v0")
    a(f"s_mul_i32 s{sT0}, s{LW}, 640")
    a(f"s_add_u32 s{sT0}, s{sT0}, {LDS_M}")
    a(f"v_lshlrev_b32 v{t1}, 2, v{t1}")
    a(f"v_add_u32 v{t1}, s{sT0}, v{t1}")
    for i in range(5):
        a(f"v_add_f32 v{vCA+i}, v{vCA+i}, v{vD+i}")
        a(f"ds_write_b32 v{t1}, v{vCA+i} offset:{i*128}")
    endphase()
    issue()
    a(f"s_cmp_eq_u32 s{LW}, 0")
    a(f"s_cbranch_scc0 {name}_ld_p2")
    a(f"v_lshlrev_b32 v{t0}, 4, v0")
    a(f"v_add_u32 v{t1}, {LDS_M}, v{t0}")
    for i in range(4):
        a(f"ds_read_b128 v[{vD+4*i}:{vD+4*i+3}], v{t1} offset:{i*640}")
    a(f"s_lshl_b32 s{sT0}, s{sCW}, 3")
    a(f"s_add_u32 s{sT0}, s{sT0}, s{sMT}")
    a(f"s_lshl_b32 s{sT0}, s{sT0}, 10")
    a(f"s_add_u32 s{sT0}, s{sT0}, {CS_OFF}")
    a("s_waitcnt lgkmcnt(0)")
    for k in range(4):
        a(f"v_add_f32 v{vD+k}, v{vD+k}, v{vD+4+k}")
        a(f"v_add_f32 v{vD+8+k}, v{vD+8+k}, v{vD+12+k}")
    for k in range(4):
        a(f"v_add_f32 v{vD+k}, v{vD+k}, v{vD+8+k}")
    a(f"buffer_store_dwordx4 v[{vD}:{vD+3}], v{t0}, s[{SW}:{SW+3}], s{sT0} offen sc1")
    a("s_nop 1")
    a.label(f"{name}_ld_p2")
    vF = 104
    for i in range(16):
        a(f"v_lshlrev_b32 v{vF+2*i}, 16, v{vX+i}")
        a(f"v_and_b32 v{vF+2*i+1}, 0xffff0000, v{vX+i}")
    def reduce32(acc):
        for sh in (1, 2, 4, 8):
            a("s_nop 1")
            a(f"v_add_f32_dpp v{acc}, v{acc}, v{acc} row_ror:{sh} row_mask:0xf bank_mask:0xf")
        a(f"v_mov_b32 v{t3}, v{acc}")
        a("s_nop 1")
        a(f"v_permlane16_swap_b32 v{acc}, v{t3}")
        a("s_nop 1")
        a(f"v_add_f32 v{acc}, v{acc}, v{t3}")
    s0, s1 = 136, 137
    a(f"v_add_f32 v{s0}, v{vF}, v{vF+1}")
    a(f"v_add_f32 v{s1}, v{vF+2}, v{vF+3}")
    for i in range(4, 32, 2):
        a(f"v_add_f32 v{s0}, v{s0}, v{vF+i}")
        a(f"v_add_f32 v{s1}, v{s1}, v{vF+i+1}")
    a(f"v_add_f32 v{s0}, v{s0}, v{s1}")
    reduce32(s0)
    mean = 138
    a(f"v_mul_f32 v{mean}, {f32(1.0/1024)}, v{s0}")
    for i in range(32):
        a(f"v_sub_f32 v{vF+i}, v{vF+i}, v{mean}")
    a(f"v_mul_f32 v{s0}, v{vF}, v{vF}")
    a(f"v_mul_f32 v{s1}, v{vF+1}, v{vF+1}")
    for i in range(2, 32, 2):
        a(f"v_fmac_f32 v{s0}, v{vF+i}, v{vF+i}")
        a(f"v_fmac_f32 v{s1}, v{vF+i+1}, v{vF+i+1}")
    a(f"v_add_f32 v{s0}, v{s0}, v{s1}")
    reduce32(s0)
    var, mb, r_v, rs_v = 139, 140, 141, 142
    def rbf(r):
        a(f"v_cvt_pk_bf16_f32 v{r}, v{r}, v{r}")
        a(f"v_and_b32 v{r}, 0xffff0000, v{r}")
    a(f"v_mul_f32 v{var}, {f32(1.0/1024)}, v{s0}")
    a(f"v_mov_b32 v{mb}, v{mean}")
    rbf(mb)
    a(f"v_mov_b32 v{t0}, v{var}")
    rbf(t0)
    a(f"v_add_f32 v{t0}, {f32(1e-5)}, v{t0}")
    rbf(t0)
    a(f"v_sqrt_f32 v{t0}, v{t0}")
    a("s_nop 0")
    rbf(t0)
    a(f"v_rcp_f32 v{r_v}, v{t0}")
    a("s_nop 0")
    a(f"v_mul_f32 v{t1}, v{r_v}, v{r_v}")
    a(f"v_mul_f32 v{t1}, v{t1}, v{var}")
    rbf(t1)
    a(f"v_add_f32 v{t1}, {f32(1e-5)}, v{t1}")
    rbf(t1)
    a(f"v_sqrt_f32 v{t1}, v{t1}")
    a("s_nop 0")
    rbf(t1)
    a(f"v_rcp_f32 v{t1}, v{t1}")
    a("s_nop 0")
    a(f"v_mul_f32 v{rs_v}, v{r_v}, v{t1}")
    a(f"v_mul_f32 v{mb}, v{mb}, v{r_v}")
    a(f"v_sub_f32 v{mb}, 0, v{mb}")
    a(f"v_mul_f32 v{mean}, v{mean}, v{rs_v}")
    a(f"v_sub_f32 v{mean}, 0, v{mean}")
    a(f"v_and_b32 v{t0}, 31, v0")
    a(f"v_cmp_eq_u32 vcc, 1, v{t0}")
    a("s_nop 1")
    a(f"v_cndmask_b32 v{r_v}, v{r_v}, v{mb}, vcc")
    a(f"v_cmp_eq_u32 vcc, 2, v{t0}")
    a("s_nop 1")
    a(f"v_cndmask_b32 v{r_v}, v{r_v}, v{rs_v}, vcc")
    a(f"v_cmp_eq_u32 vcc, 3, v{t0}")
    a("s_nop 1")
    a(f"v_cndmask_b32 v{r_v}, v{r_v}, v{mean}, vcc")
    a(f"v_lshlrev_b32 v{t1}, 13, v{t0}")
    a(f"v_lshl_add_u32 v{t1}, v{g_}, 2, v{t1}")
    a(f"v_add_u32 v{t1}, {RS_OFF}, v{t1}")
    a(f"v_mov_b32 v{t2}, 0x7fffff00")
    a(f"v_cmp_gt_u32 vcc, 4, v{t0}")
    a("s_nop 1")
    a(f"v_cndmask_b32 v{t1}, v{t2}, v{t1}, vcc")
    a(f"buffer_store_dword v{r_v}, v{t1}, s[{SW}:{SW+3}], 0 offen sc1")
    endphase()
    a(f"s_mov_b32 s{sPH}, 3")
    a.label(f"{name}_ld_loop")
    a(f"s_cmp_eq_u32 s{LW}, 0")
    a(f"s_cbranch_scc0 {name}_ld_iss")
    a(f"s_cmp_eq_u32 s{sPH}, 4")
    a(f"s_cbranch_scc0 {name}_ld_n4")
    a(f"s_and_b32 s{sT0}, s2, 3")
    a(f"s_lshl_b32 s{sT0}, s{sT0}, 3")
    a(f"s_lshl_b32 s{sT0}, 1, s{sT0}")
    a(f"s_and_b32 s{sT1}, s2, 0xfc")
    a(f"v_mov_b32 v{t0}, s{sT0}")
    a(f"v_lshlrev_b32 v{t1}, 8, v0")
    a(f"buffer_atomic_add v{t0}, v{t1}, s[{SD}:{SD+3}], s{sT1} offen sc1")
    a.label(f"{name}_ld_n4")
    a(f"s_cmp_eq_u32 s{sPH}, 10")
    a(f"s_cbranch_scc0 {name}_ld_n10")
    a(f"v_lshlrev_b32 v{t1}, 2, v0")
    a(f"buffer_load_dword v{t2}, v{t1}, s[{SD}:{SD+3}], 0 offen sc1")
    a.label(f"{name}_ld_n10")
    a(f"s_cmp_eq_u32 s{sPH}, 11")
    a(f"s_cbranch_scc0 {name}_ld_n11")
    a(f"s_mov_b32 s{sT2}, 0")
    a.label(f"{name}_ld_poll")
    a(f"v_and_b32 v{t2}, 0x01010101, v{t2}")
    a(f"v_cmp_ne_u32 vcc, 0x01010101, v{t2}")
    a("s_nop 1")
    a(f"s_cbranch_vccz {name}_ld_ok")
    a("s_sleep 8")
    a(f"buffer_load_dword v{t2}, v{t1}, s[{SD}:{SD+3}], 0 offen sc1")
    a("s_waitcnt vmcnt(0)")
    a(f"s_add_u32 s{sT2}, s{sT2}, 1")
    a(f"s_cmp_lt_u32 s{sT2}, 20000")
    a(f"s_cbranch_scc1 {name}_ld_poll")
    a.label(f"{name}_ld_ok")
    a(f"v_lshlrev_b32 v{t0}, 4, v0")
    a(f"s_lshl_b32 s{sT0}, s{sCW}, 13")
    a(f"s_add_u32 s{sT0}, s{sT0}, {CS_OFF}")
    a(f"s_add_u32 s{sT1}, s{sT0}, 4096")
    for i in range(8):
        a(f"buffer_load_dwordx4 v[{vD+4*i}:{vD+4*i+3}], v{t0}, s[{SW}:{SW+3}], s{sT0 if i < 4 else sT1} offen offset:{(i%4)*1024} sc1")
    a(f"s_lshl_b32 s{sT0}, s{sCBM}, 6")
    a(f"s_lshl_b32 s{sT1}, s{sCBS}, 6")
    a(f"s_sub_u32 s{sT1}, s{sT1}, 256")
    a(f"v_mov_b32 v{t1}, s{sT0}")
    a(f"v_mov_b32 v{t2}, s{sT1}")
    a(f"v_cmp_gt_u32 vcc, 32, v0")
    a("s_nop 1")
    a(f"v_cndmask_b32 v{t1}, v{t2}, v{t1}, vcc")
    a(f"v_lshl_add_u32 v{t1}, v0, 3, v{t1}")
    a(f"buffer_load_dwordx2 v[{vX}:{vX+1}], v{t1}, s[{SB1}:{SB1+3}], 0 offen")
    a.label(f"{name}_ld_n11")
    a(f"s_cmp_eq_u32 s{sPH}, 12")
    a(f"s_cbranch_scc0 {name}_ld_iss")
    for step in (16, 8, 4):
        for k in range(step):
            a(f"v_add_f32 v{vD+k}, v{vD+k}, v{vD+step+k}")
    a(f"v_lshlrev_b32 v{vD+4}, 16, v{vX}")
    a(f"v_and_b32 v{vD+5}, 0xffff0000, v{vX}")
    a(f"v_lshlrev_b32 v{vD+6}, 16, v{vX+1}")
    a(f"v_and_b32 v{vD+7}, 0xffff0000, v{vX+1}")
    a(f"v_lshlrev_b32 v{t0}, 4, v0")
    a(f"v_add_u32 v{t0}, {LDS_M}, v{t0}")
    a(f"ds_write_b128 v{t0}, v[{vD}:{vD+3}]")
    a(f"ds_write_b128 v{t0}, v[{vD+4}:{vD+7}] offset:1024")
    a.label(f"{name}_ld_iss")
    issue()
    endphase()
    a(f"s_add_u32 s{sPH}, s{sPH}, 1")
    a(f"s_cmp_le_u32 s{sPH}, 13")
    a(f"s_cbranch_scc1 {name}_ld_loop")
    endphase(0)
    a("s_endpgm")

ACC = 96
vAA = 2
vBA = 6
vSA = 8
vBF = 12
vAF = 32

def gen_compute(a, name, stflag):
    t0, t1, t2, t3 = 48, 49, 50, 51
    W = sWAVE
    a(f"v_and_b32 v{t0}, 31, v0")
    a(f"v_lshrrev_b32 v{t1}, 5, v0")
    a(f"v_bfe_u32 v{t2}, v0, 1, 3")
    a(f"v_xor_b32 v{t2}, v{t2}, v{t1}")
    a(f"v_lshlrev_b32 v{t2}, 4, v{t2}")
    a(f"v_lshl_add_u32 v{t2}, v{t0}, 7, v{t2}")
    a(f"s_mul_i32 s{sT0}, s{W}, 24576")
    for st in range(4):
        a(f"v_xor_b32 v{vAA+st}, {st*32}, v{t2}")
        a(f"v_add_u32 v{vAA+st}, s{sT0}, v{vAA+st}")
    a(f"v_bfe_u32 v{t0}, v0, 4, 1")
    a(f"v_and_b32 v{t2}, 3, v0")
    a(f"v_lshlrev_b32 v{t0}, 5, v{t0}")
    a(f"v_lshl_add_u32 v{t0}, v{t2}, 3, v{t0}")
    a(f"v_bfe_u32 v{t2}, v0, 2, 2")
    a(f"v_lshl_add_u32 v{t1}, v{t1}, 3, v{t2}")
    a(f"v_bfe_u32 v{t3}, v0, 3, 1")
    a(f"v_lshlrev_b32 v{t3}, 6, v{t3}")
    a(f"v_xor_b32 v{t3}, v{t3}, v{t0}")
    a(f"v_lshl_add_u32 v{t3}, v{t1}, 7, v{t3}")
    a(f"v_add_u32 v{vBA}, {LDS_B}, v{t3}")
    a(f"v_xor_b32 v{vBA+1}, 64, v{vBA}")
    a(f"v_lshl_add_u32 v{t3}, v{t1}, 6, v{t0}")
    a(f"v_add_u32 v{vSA}, {LDS_B}, v{t3}")
    for r in range(ACC, 256):
        a(f"v_mov_b32 v{r}, 0")
    a(f"s_cmp_eq_u32 s{sTYPE}, 1")
    a(f"s_cbranch_scc1 {name}_cq")
    a(f"s_cmp_eq_u32 s{sTYPE}, 2")
    a(f"s_cbranch_scc1 {name}_ckv")
    H9 = [("H", "m0", 0, [0, 1]), ("H", "m1", 0, [0, 1]), ("H", "m0", 8192, [0, 1]), ("H", "m1", 8192, [0, 1]), ("H", "s", 16384, [0])]
    Q5 = [("Q", "m0", 0, [0, 1]), ("Q", "m1", 0, [0, 1]), ("Q", "m0", 8192, [0, 1]), ("Q", "m1", 8192, [0, 1]), ("Q", "s", 16384, [0, 1])]
    QKV = [("Q", "m0", 0, [0, 1]), ("Q", "m1", 0, [0, 1]), ("V", "s", 8192, [0, 1]), None, ("K", "s", 16384, [0, 1])]
    gen_variant(a, name + "_h", H9, stflag)
    a.label(f"{name}_cq")
    gen_variant(a, name + "_q", Q5, stflag)
    a.label(f"{name}_ckv")
    gen_variant(a, name + "_kv", QKV, stflag)

def acc(nb, ps):
    return ACC + (nb * 2 + ps) * 16

def gen_variant(a, name, spec, stflag):
    blocks = [nb for nb in range(5) if spec[nb] is not None]
    mf = [(nb, ps) for nb in blocks for ps in spec[nb][3]]

    def rdB(nb, slot, st):
        kind, fmt, off, _ = spec[nb]
        o = []
        for j in range(2):
            if fmt == "s":
                o.append((f"ds_read_b64_tr_b16 v[{vBF+4*nb+2*j}:{vBF+4*nb+2*j+1}], v{vSA} offset:{slot*SLOT_B + off + st*1024 + j*256}", ("B", nb, j)))
            else:
                o.append((f"ds_read_b64_tr_b16 v[{vBF+4*nb+2*j}:{vBF+4*nb+2*j+1}], v{vBA + int(fmt[1])} offset:{slot*SLOT_B + off + st*2048 + j*512}", ("B", nb, j)))
        return o
    def rdA(slot, st):
        buf = st % 2
        return [(f"ds_read_b128 v[{vAF+buf*8+ps*4}:{vAF+buf*8+ps*4+3}], v{vAA+st} offset:{slot*8192 + ps*4096}", ("A", buf, ps)) for ps in range(2)]

    def tile(out, q, slot, last, extra=None):
        for st in range(4):
            nslot, nst = (slot, st + 1) if st < 3 else ((slot + 1) % 3, 0)
            nxt = not (last and st == 3)
            pend = []
            if nxt:
                pend += rdA(nslot, nst)
            hold = BAR_AT if st == 3 else 0
            for mi, (nb, ps) in enumerate(mf):
                tags = []
                for (nb2, ps2) in mf[mi:mi + 2]:
                    tags += [("B", nb2, 0), ("B", nb2, 1), ("A", st % 2, ps2)]
                own = [("B", nb, 0), ("B", nb, 1), ("A", st % 2, ps)]
                probe = Q("p", 15); probe.issued = list(q.issued); probe.done = q.done
                if probe.need(own) is not None:
                    n = q.need(tags)
                    out.append(f"s_waitcnt lgkmcnt({n})")
                A_ = v(vAF + (st % 2) * 8 + ps * 4, 4)
                B_ = v(vBF + 4 * nb, 4)
                c = v(acc(nb, ps), 16)
                if spec[nb][0] == "V":
                    out.append(f"v_mfma_f32_32x32x16_bf16 {c}, {A_}, {B_}, {c}")
                else:
                    out.append(f"v_mfma_f32_32x32x16_bf16 {c}, {B_}, {A_}, {c}")
                if nxt and (mi + 1 == len(mf) or mf[mi + 1][0] != nb):
                    pend += rdB(nb, nslot, nst)
                if st == 3 and nxt and mi + 1 == hold:
                    out.append("s_waitcnt lgkmcnt(0)")
                    q.drain()
                    out.append("s_barrier")
                if mi + 1 >= hold:
                    k = 0
                    while pend and k < 3:
                        ins, tag = pend.pop(0)
                        out.append(ins); q.issue(tag); k += 1
                if extra and (st, mi) in extra:
                    out += extra[(st, mi)]
            assert not pend, pend

    BAR_AT = 3
    a("s_barrier")
    ST.mark(a, 1)
    q = Q("lgkm", 15)
    for ins, tag in rdA(0, 0) + sum((rdB(nb, 0, 0) for nb in blocks), []):
        a(ins)
    a("s_waitcnt lgkmcnt(0)")
    dummy = []
    tile(dummy, q, 2, False)
    body = []
    for slot in range(3):
        tile(body, q, slot, False)
    a(f"s_mov_b32 s{sPH}, 5")
    a(".p2align 6")
    a.label(f"{name}_loop")
    for ln in body: a(ln)
    a(f"s_sub_u32 s{sPH}, s{sPH}, 1")
    a(f"s_cmp_lg_u32 s{sPH}, 0")
    a(f"s_cbranch_scc1 {name}_loop")
    ST.mark(a, 2)
    isH = spec[0][0] == "H"
    hasV = any(sp and sp[0] == "V" for sp in spec)
    vR = 52
    vO = 60
    vRow = 62
    pre = []
    pre.append(f"s_lshl_b32 s{sT0}, s{sMT}, 8")
    pre.append(f"s_lshl_b32 s{sT1}, s{sWAVE}, 6")
    pre.append(f"s_add_u32 s{sT0}, s{sT0}, s{sT1}")
    pre.append(f"s_lshl_b32 s{sT0}, s{sT0}, 2")
    pre.append(f"s_add_u32 s{sT0}, s{sT0}, {RS_OFF + (16384 if isH else 0)}")
    pre.append(f"s_add_u32 s{sT1}, s{sT0}, 8192")
    pre.append(f"s_lshl_b32 s{sT2}, s{sFLIP}, 7")
    pre.append(f"v_and_b32 v{vRow}, 31, v0")
    pre.append(f"v_lshlrev_b32 v{vRow}, 2, v{vRow}")
    pre.append(f"v_add_u32 v{vRow}, s{sT2}, v{vRow}")
    pre.append(f"v_xor_b32 v{vRow+1}, 0x80, v{vRow}")
    pre2 = []
    for ps in range(2):
        pre2.append(f"buffer_load_dword v{vR+4*ps}, v{vRow+ps}, s[{SW}:{SW+3}], s{sT0} offen sc1")
        pre2.append(f"buffer_load_dword v{vR+4*ps+2}, v{vRow+ps}, s[{SW}:{SW+3}], s{sT1} offen sc1")
    extra = {(0, 0): pre[:4], (0, 1): pre[4:8], (0, 2): pre[8:], (0, 3): pre2[:1], (0, 5): pre2[1:2], (1, 1): pre2[2:3], (1, 3): pre2[3:]}
    vVS = acc(3, 0)
    last = []
    tile(last, q, 0, True, extra)
    for ln in last: a(ln)

    ST.mark(a, 3)
    a(f"s_and_b32 s{sT0}, s{sWAVE}, 1")
    a(f"s_lshl_b32 s{sT0}, s{sT0}, 1")
    a(f"s_add_u32 s{sT0}, s{sT0}, s{sFLIP}")
    a(f"s_lshl_b32 s{sT0}, s{sT0}, 10")
    a(f"v_lshlrev_b32 v{vO}, 4, v0")
    a(f"v_add_u32 v{vO}, s{sT0}, v{vO}")
    a(f"v_xor_b32 v{vO+1}, 0x400, v{vO}")
    a(f"s_lshr_b32 s{sT0}, s{sWAVE}, 1")
    a(f"s_lshl_b32 s{sT1}, s{sMT}, 1")
    a(f"s_add_u32 s{sT0}, s{sT0}, s{sT1}")
    if isH:
        a(f"s_mul_i32 s{sT3}, s{sT0}, {A2_MT}")
        a(f"s_add_u32 s{sT3}, s{sT3}, {A2_OFF + 64*4096}")
    else:
        a(f"s_mul_i32 s{sT3}, s{sT0}, {QF_MT}")
        a(f"s_add_u32 s{sT3}, s{sT3}, {QF_OFF}")
    a(f"s_lshl_b32 s{sT1}, s{sCBM}, 13")
    a(f"s_add_u32 s{sOA}, s{sT3}, s{sT1}")
    a(f"s_lshl_b32 s{sT1}, s{sCBS}, 13")
    a(f"s_add_u32 s{sOB}, s{sT3}, s{sT1}")
    vT = 63
    a(f"v_lshrrev_b32 v{vT}, 5, v0")
    a(f"v_lshlrev_b32 v{vT}, 4, v{vT}")
    a(f"v_add_u32 v{vT}, {LDS_M}, v{vT}")
    vCS = [12, 64]
    vBI = [28, 80]
    vK0, vK1 = 44, 46
    vTMP = 2
    def rdtab(nb, buf):
        for g in range(4):
            a(f"ds_read_b128 v[{vCS[buf]+4*g}:{vCS[buf]+4*g+3}], v{vT} offset:{nb*128 + g*32}")
        if isH:
            for g in range(4):
                a(f"ds_read_b128 v[{vBI[buf]+4*g}:{vBI[buf]+4*g+3}], v{vT} offset:{1024 + nb*128 + g*32}")
    nrd = 8 if isH else 4
    order = [nb for nb in blocks if spec[nb][0] != "V"]
    rdtab(order[0], 0)
    a(f"v_mov_b32 v{vK0}, {f32(G_C0)}")
    a(f"v_mov_b32 v{vK1}, {f32(G_C1)}")
    a("s_waitcnt vmcnt(0)")
    if not isH:
        for ps in range(2):
            a(f"v_mul_f32 v{vR+4*ps+1}, {f32(QSCALE)}, v{vR+4*ps}")
            a(f"v_mul_f32 v{vR+4*ps+3}, {f32(QSCALE)}, v{vR+4*ps+2}")
    if hasV:
        a(f"s_lshl_b32 s{sT0}, s{sMT}, 8")
        a(f"s_lshl_b32 s{sT1}, s{sWAVE}, 6")
        a(f"s_add_u32 s{sT0}, s{sT0}, s{sT1}")
        a(f"s_lshl_b32 s{sT0}, s{sT0}, 2")
        a(f"s_add_u32 s{sT4}, s{sT0}, {RS_OFF}")
        a(f"s_add_u32 s{sT5}, s{sT4}, 8192")
        a(f"v_lshrrev_b32 v{vRow}, 5, v0")
        a(f"v_lshlrev_b32 v{vRow}, 4, v{vRow}")
    def vstats(ps, dst):
        for g in range(4):
            a(f"buffer_load_dwordx4 v[{dst+4*g}:{dst+4*g+3}], v{vRow}, s[{SW}:{SW+3}], s{sT4} offen offset:{ps*128 + g*32} sc1")
            a(f"buffer_load_dwordx4 v[{dst+16+4*g}:{dst+16+4*g+3}], v{vRow}, s[{SW}:{SW+3}], s{sT5} offen offset:{ps*128 + g*32} sc1")
    if hasV:
        vstats(0, vVS)
    a("s_nop 7")
    def P(r): return v(r, 2)
    for bi, nb in enumerate(order):
        buf = bi % 2
        if bi + 1 < len(order):
            rdtab(order[bi + 1], 1 - buf)
            a(f"s_waitcnt lgkmcnt({nrd})")
        else:
            a("s_waitcnt lgkmcnt(0)")
        kind = spec[nb][0]
        if isH and nb == 4:
            a(f"s_cmp_eq_u32 s{sCW}, 31")
            a(f"s_cbranch_scc1 {name}_end")
        for ps in spec[nb][3]:
            c = acc(nb, ps)
            sel = 1 if kind == "Q" else 0
            sc_ = f"op_sel:[0,{sel},0] op_sel_hi:[1,{sel},1]"
            if kind == "H":
                for half in range(2):
                    T = [2, 4, 6, 8]
                    idx = [half * 8 + 2 * i for i in range(4)]
                    for i, e in enumerate(idx):
                        a(f"v_pk_fma_f32 {P(T[i])}, {P(vCS[buf]+e)}, {P(vR+4*ps+2)}, {P(vBI[buf]+e)} {sc_}")
                    for i, e in enumerate(idx):
                        a(f"v_pk_fma_f32 {P(c+e)}, {P(c+e)}, {P(vR+4*ps)}, {P(T[i])} {sc_}")
                    for i, e in enumerate(idx):
                        a(f"v_pk_mul_f32 {P(T[i])}, {P(c+e)}, {P(c+e)}")
                    for i, e in enumerate(idx):
                        a(f"v_pk_fma_f32 {P(T[i])}, {P(T[i])}, {P(vK1)}, {P(vK0)} op_sel:[0,0,0] op_sel_hi:[1,0,0]")
                    for i, e in enumerate(idx):
                        a(f"v_pk_mul_f32 {P(T[i])}, {P(T[i])}, {P(c+e)}")
                    for i in range(8):
                        a(f"v_exp_f32 v{2+i}, v{2+i}")
                    for i, e in enumerate(idx):
                        a(f"v_pk_add_f32 {P(T[i])}, {P(T[i])}, 1.0 op_sel_hi:[1,0]")
                    for i in range(8):
                        a(f"v_rcp_f32 v{2+i}, v{2+i}")
                    for i, e in enumerate(idx):
                        a(f"v_pk_mul_f32 {P(c+e)}, {P(c+e)}, {P(T[i])}")
                    for i, e in enumerate(idx):
                        a(f"v_cvt_pk_bf16_f32 v{c+half*8+i}, v{c+e}, v{c+e+1}")
                    emit_store(a, spec, nb, ps, half, c + half * 8, vO, stflag)
            else:
                for e in range(0, 16, 2):
                    a(f"v_pk_mul_f32 {P(c+e)}, {P(c+e)}, {P(vR+4*ps)} op_sel:[0,{sel}] op_sel_hi:[1,{sel}]")
                for e in range(0, 16, 2):
                    a(f"v_pk_fma_f32 {P(c+e)}, {P(vCS[buf]+e)}, {P(vR+4*ps+2)}, {P(c+e)} {sc_}")
                for half in range(2):
                    for i in range(4):
                        e = half * 8 + 2 * i
                        a(f"v_cvt_pk_bf16_f32 v{c+half*8+i}, v{c+e}, v{c+e+1}")
                    emit_store(a, spec, nb, ps, half, c + half * 8, vO, stflag)
    if hasV:
        nb = 2
        a(f"v_and_b32 v2, 31, v0")
        a(f"v_lshlrev_b32 v2, 2, v2")
        a(f"v_add_u32 v2, {LDS_M + 256}, v2")
        a(f"ds_read_b32 v4, v2")
        vstats(1, 64)
        a("s_waitcnt lgkmcnt(0)")
        for ps in range(2):
            src = vVS if ps == 0 else 64
            c = acc(nb, ps)
            a(f"s_waitcnt vmcnt({8 if ps == 0 else 2})")
            for e in range(0, 16, 2):
                a(f"v_pk_mul_f32 {P(c+e)}, {P(c+e)}, {P(src+e)}")
            for e in range(0, 16, 2):
                a(f"v_pk_fma_f32 {P(c+e)}, {P(src+16+e)}, {P(4)}, {P(c+e)} op_sel:[0,0,0] op_sel_hi:[1,0,1]")
            for half in range(2):
                for i in range(4):
                    e = half * 8 + 2 * i
                    a(f"v_cvt_pk_bf16_f32 v{c+half*8+i}, v{c+e}, v{c+e+1}")
                emit_store(a, spec, nb, ps, half, c + half * 8, vO, stflag)
    a.label(f"{name}_end")
    ST.mark(a, 4)
    ST.flush(a, 5, SW, sWAVE, ST_OFF)
    a("s_endpgm")

def emit_store(a, spec, nb, ps, half, reg, vO, stflag):
    kind = spec[nb][0]
    if kind in ("H", "Q"):
        base = sOB if nb == 4 else sOA
        off = (0 if nb == 4 else nb * 8192) + half * 4096
        a(f"s_add_u32 s{sT0}, s{base}, {off}")
        a(f"buffer_store_dwordx4 v[{reg}:{reg+3}], v{vO+ps}, s[{SW}:{SW+3}], s{sT0} offen {stflag}")
    else:
        a(f"s_lshl_b32 s{sT0}, s{sMT}, 3")
        a(f"s_lshl_b32 s{sT1}, s{sWAVE}, 1")
        a(f"s_add_u32 s{sT0}, s{sT0}, s{sT1}")
        a(f"s_lshl_b32 s{sT0}, s{sT0}, 12")
        a(f"s_add_u32 s{sT0}, s{sT0}, {KV_OFF + ps*4096 + (2048 if kind == 'V' else 0) + half*1024}")
        a(f"v_lshlrev_b32 v10, 4, v0")
        a(f"buffer_store_dwordx4 v[{reg}:{reg+3}], v10, s[{SW}:{SW+3}], s{sT0} offen {stflag}")
```

```python
import math
from asmlib import *
from layout import *

LDS_KV = 0
LDS_GB = 65536
LDS_PROG = 163840 - 64
RED_STRIDE = 272
RED_PART = 128 * RED_STRIDE

SX, SWO, SW2, SW, SB2, SD, SO, SWC = 24, 28, 32, 36, 40, 44, 48, 52
sWAVE, sMT, sNT, sAMT, sAH = 56, 57, 58, 59, 60
sT0, sT1, sT2, sT3 = 61, 62, 63, 64
sIT, sCH, sTGT, sKVO, sM0, sPASS, sQO, sOO, sSPIN = 65, 66, 67, 68, 69, 70, 71, 72, 73
sAO, sBO, sLI = 66, 67, 68
ST = Stamps(False)

def srd(a, base, ptr, size):
    a(f"s_mov_b32 s{base}, s{ptr}")
    a(f"s_mov_b32 s{base+1}, s{ptr+1}")
    a(f"s_mov_b32 s{base+2}, {size}")
    a(f"s_mov_b32 s{base+3}, 0x20000")

def gen_k3(name, do_att=True, do_gemm=True, NQ=1, stamps=False, kidx=1, ostflag="sc1"):
    global ST
    ST = Stamps(stamps, 76, kidx)
    fused = do_att and do_gemm
    a = Asm()
    a(f".globl {name}\n.p2align 8\n.type {name},@function")
    a.label(name)
    a("s_cmp_ge_u32 s2, 256")
    a(f"s_cbranch_scc1 {name}_exit")
    ST.mark(a, 0)
    a("s_load_dwordx2 s[8:9], s[0:1], 0")
    a("s_load_dwordx2 s[10:11], s[0:1], 32")
    a("s_load_dwordx8 s[12:19], s[0:1], 64")
    a("s_load_dwordx2 s[20:21], s[0:1], 96")
    a("v_lshrrev_b32 v1, 6, v0")
    a("v_and_b32 v0, 63, v0")
    a(f"v_readfirstlane_b32 s{sWAVE}, v1")
    a(f"s_and_b32 s{sT0}, s2, 7")
    a(f"s_lshr_b32 s{sT1}, s2, 3")
    a(f"s_and_b32 s{sMT}, s{sT0}, 3")
    a(f"s_lshl_b32 s{sMT}, s{sMT}, 2")
    a(f"s_and_b32 s{sT2}, s{sT1}, 3")
    a(f"s_add_u32 s{sMT}, s{sMT}, s{sT2}")
    a(f"s_lshr_b32 s{sNT}, s{sT0}, 2")
    a(f"s_lshl_b32 s{sNT}, s{sNT}, 3")
    a(f"s_lshr_b32 s{sT2}, s{sT1}, 2")
    a(f"s_add_u32 s{sNT}, s{sNT}, s{sT2}")
    a(f"s_lshr_b32 s{sAMT}, s2, 4")
    a(f"s_and_b32 s{sAH}, s2, 15")
    a(f"v_mov_b32 v2, {LDS_PROG}")
    a("v_mov_b32 v4, 0\nv_mov_b32 v5, 0\nv_mov_b32 v6, 0\nv_mov_b32 v7, 0")
    a("ds_write_b128 v2, v[4:7]")
    a("s_waitcnt lgkmcnt(0)")
    srd(a, SX, 8, 4194304)
    srd(a, SWO, 10, 2097152)
    srd(a, SW2, 12, 7340032)
    srd(a, SB2, 14, 2048)
    srd(a, SO, 16, 4194304)
    srd(a, SD, 18, 256)
    srd(a, SW, 20, WS_USED)
    srd(a, SWC, 12, 7340032)
    a(f"s_cmp_ge_u32 s{sWAVE}, 4")
    a(f"s_cbranch_scc1 {name}_gemm")
    if do_att:
        gen_att(a, name, NQ, fused, ostflag)
    else:
        a("s_barrier")
    if do_gemm:
        a(f"s_branch {name}_final")
    else:
        ST.flush(a, 3, SW, sWAVE, ST_OFF)
        a("s_endpgm")
    a.label(f"{name}_gemm")
    if do_gemm:
        gen_gemm(a, name, NQ, fused)
        a.label(f"{name}_final")
        gen_final(a, name)
    else:
        a("s_barrier")
    a.label(f"{name}_exit")
    a("s_endpgm")
    return a.text()

def gen_att(a, name, NQ, fused, ostflag):
    vL16 = 1
    vPA, vPR, vPV, vPG = 2, 3, 4, 5
    vIDX = 6
    vT0, vT1 = 8, 9
    K0, K1, V0, V1 = 12, 16, 20, 24
    SEL = 28
    P = 32
    S = [48, 64]
    Qf = [80 + 8 * i for i in range(NQ)]
    LA = [96 + 4 * i for i in range(NQ)]
    C = [112 + 16 * i for i in range(NQ)]
    O = [144 + 16 * i for i in range(NQ)]
    QN = 176
    NP = 2 // NQ
    NCH = 16 * NP
    MF = "v_mfma_f32_32x32x16_bf16"
    a(f"v_lshlrev_b32 v{vL16}, 4, v0")
    a(f"s_mul_i32 s{sQO}, s{sAMT}, {QF_MT}")
    a(f"s_lshl_b32 s{sT0}, s{sAH}, {13 if NQ == 1 else 14}")
    a(f"s_lshl_b32 s{sT1}, s{sWAVE}, 10")
    a(f"s_add_u32 s{sT0}, s{sT0}, s{sT1}")
    a(f"s_add_u32 s{sQO}, s{sQO}, s{sT0}")
    a(f"s_add_u32 s{sQO}, s{sQO}, {QF_OFF}")
    a(f"s_mul_i32 s{sOO}, s{sAMT}, {A2_MT}")
    a(f"s_add_u32 s{sOO}, s{sOO}, s{sT0}")
    if A2_OFF: a(f"s_add_u32 s{sOO}, s{sOO}, {A2_OFF}")
    a(f"s_lshr_b32 s{sKVO}, s2, 3")
    a(f"s_and_b32 s{sKVO}, s{sKVO}, 15")
    a(f"s_lshl_b32 s{sM0}, s{sWAVE}, 12")
    a(f"s_mov_b32 s{sCH}, 0")
    def dma(slot):
        o = []
        o.append(f"s_lshl_b32 s{sT0}, s{sKVO}, 14")
        o.append(f"s_add_u32 s{sT0}, s{sT0}, s{sM0}")
        o.append(f"s_add_u32 s{sT0}, s{sT0}, {KV_OFF}")
        o.append(f"s_cmp_lt_u32 s{sCH}, {NCH}")
        o.append(f"s_cselect_b32 s{sT0}, s{sT0}, 0x7f000000")
        o.append(f"s_add_u32 m0, s{sM0}, {LDS_KV + slot*16384}")
        o.append(f"s_add_u32 s{sKVO}, s{sKVO}, 1")
        for i in range(4):
            o.append(f"buffer_load_dwordx4 v{vL16}, s[{SW}:{SW+3}], s{sT0} offen offset:{i*1024} lds")
        o.append(f"s_and_b32 s{sKVO}, s{sKVO}, 15")
        o.append(f"s_add_u32 s{sCH}, s{sCH}, 1")
        return o
    for ln in dma(0): a(ln)
    for qi in range(NQ):
        for f in range(2):
            a(f"s_add_u32 s{sT1}, s{sQO}, {qi*8192 + f*4096}")
            a(f"buffer_load_dwordx4 {v(Qf[qi]+4*f,4)}, v{vL16}, s[{SW}:{SW+3}], s{sT1} offen")
    for sl in (1, 2):
        for ln in dma(sl): a(ln)
    if NP == 2:
        for f in range(2):
            a(f"s_add_u32 s{sT1}, s{sQO}, {16*8192 + f*4096}")
            a(f"buffer_load_dwordx4 {v(QN+4*f,4)}, v{vL16}, s[{SW}:{SW+3}], s{sT1} offen")
    a(f"s_lshl_b32 s{sT0}, s{sWAVE}, 2")
    a(f"s_add_u32 s{sT0}, s{sT0}, {LDS_PROG}")
    a(f"v_mov_b32 v{vPA}, s{sT0}")
    a(f"v_and_b32 v{vPR}, 3, v0")
    a(f"v_lshlrev_b32 v{vPR}, 2, v{vPR}")
    a(f"v_add_u32 v{vPR}, {LDS_PROG}, v{vPR}")
    a(f"v_mov_b32 v{vT0}, 0x3f803f80")
    a(f"v_and_b32 v{vT1}, 4, v0")
    a(f"v_cmp_eq_u32 vcc, 0, v{vT1}")
    a("s_nop 1")
    a(f"v_cndmask_b32 v{SEL}, 0, v{vT0}, vcc")
    a(f"v_cndmask_b32 v{SEL+1}, 0, v{vT0}, vcc")
    a(f"v_cndmask_b32 v{SEL+2}, v{vT0}, 0, vcc")
    a(f"v_cndmask_b32 v{SEL+3}, v{vT0}, 0, vcc")
    a(f"v_mov_b32 v{vT0}, 0x4444")
    a(f"v_mov_b32 v{vIDX}, 0xeeee")
    a(f"v_and_b32 v{vT1}, 1, v0")
    a(f"v_cmp_eq_u32 vcc, 0, v{vT1}")
    a("s_nop 1")
    a(f"v_cndmask_b32 v{vIDX}, v{vIDX}, v{vT0}, vcc")
    for r in range(V1, V1 + 4): a(f"v_mov_b32 v{r}, 0")
    a(f"s_mov_b32 s{sPASS}, 0")
    a(f"s_mov_b32 s{sTGT}, 1")
    a(f"v_mov_b32 v{vPV}, 1")
    a(f"s_waitcnt vmcnt({8 + (2 if NP == 2 else 0)})")
    a("s_barrier")
    ST.mark(a, 1)

    a.label(f"{name}_pass")
    def rd(reg, tile, fr):
        return f"ds_read_b128 {v(reg,4)}, v{vL16} offset:{LDS_KV + (tile % 16)*4096 + fr*1024}"
    a(rd(P, 0, 0)); a(rd(P + 4, 0, 1))
    kt = 1 if NQ == 1 else 0
    a(rd(K0, kt, 0)); a(rd(K1, kt, 1)); a(rd(V0, 0, 2))
    for qi in range(NQ):
        for r in range(16): a(f"v_mov_b32 v{O[qi]+r}, 0")
        for r in range(4): a(f"v_mov_b32 v{LA[qi]+r}, 0")
    a("s_waitcnt lgkmcnt(0)")
    for qi in range(NQ):
        a(f"{MF} {v(S[qi],16)}, {v(P,4)}, {v(Qf[qi],4)}, 0")
        a(f"{MF} {v(S[qi],16)}, {v(P+4,4)}, {v(Qf[qi]+4,4)}, {v(S[qi],16)}")
    a("s_nop 15")
    def rowmax(src, dst):
        a(f"v_max3_f32 v{dst}, v{src}, v{src+1}, v{src+2}")
        for i in range(3, 15, 2):
            a(f"v_max3_f32 v{dst}, v{dst}, v{src+i}, v{src+i+1}")
        a(f"v_max_f32 v{dst}, v{dst}, v{src+15}")
    def xhalf_max(r, t):
        a(f"v_mov_b32 v{t}, v{r}")
        a("s_nop 1")
        a(f"v_permlane32_swap_b32 v{r}, v{t}")
        a("s_nop 1")
        a(f"v_max_f32 v{r}, v{r}, v{t}")
    for qi in range(NQ):
        rowmax(S[qi], vT0)
        xhalf_max(vT0, vT1)
        for r in range(16): a(f"v_sub_f32 v{C[qi]+r}, 0, v{vT0}")
    for r in range(16): a(f"v_add_f32 v{S[0]+r}, v{S[0]+r}, v{C[0]}")
    for r in range(8): a(f"v_mov_b32 v{P+r}, 0")
    a(f"s_mov_b32 s{sIT}, 4")

    slow = []
    def unit(out, q, u):
        U = 16 * NQ
        tl = lambda x: x // NQ
        qq = lambda x: x % NQ
        cur, nxt = S[u % 2], S[(u + 1) % 2]
        def wait(tags):
            n = q.need(tags)
            if n is not None: out.append(f"s_waitcnt lgkmcnt({n})")
        def exp(i): out.append(f"v_exp_f32 v{cur+i}, v{cur+i}")
        def cvt(i): out.append(f"v_cvt_pk_bf16_f32 v{P+i}, v{cur+2*i}, v{cur+2*i+1}")
        def reload(reg, tile, fr, tag):
            out.append(rd(reg, tile, fr)); q.issue(tag)
        upc = 4 * NQ
        ph = u % upc
        chk_at = upc - 2 if NQ == 1 else upc - 2
        c = u // upc
        if ph == chk_at:
            wait(["PG"])
            lb = f"{name}_slow{c}"
            out.append(f"v_cmp_gt_u32 vcc, s{sTGT}, v{vPG}")
            exp(0)
            out.append(f"s_cbranch_vccnz {lb}")
            out.append(f"{lb}_ret:")
            if lb not in [x[0] for x in slow]: slow.append((lb,))
        else:
            exp(0)
        exp(1)
        wait(["V1"])
        out.append(f"{MF} {v(O[qq(u-1)],16)}, {v(V1,4)}, {v(P+4,4)}, {v(O[qq(u-1)],16)}")
        if qq(u - 1) == NQ - 1: reload(V1, tl(u - 1) + 1, 3, "V1")
        exp(2); exp(3)
        if ph == 0:
            out.append(f"s_add_u32 s{sTGT}, s{sTGT}, 1")
            out.append(f"v_add_u32 v{vPV}, 1, v{vPV}")
            out.append("s_waitcnt vmcnt(4)")
            out.append(f"ds_write_b32 v{vPA}, v{vPV}"); q.issue("PW")
        dm = dma((c + 3) % 4) if ph == chk_at else []
        out += dm[:7]
        out.append(f"v_smfmac_f32_16x16x64_bf16 {v(LA[qq(u-1)],4)}, {v(SEL,4)}, {v(P,8)}, v{vIDX}")
        exp(4); out += dm[7:8]; cvt(0); exp(5)
        wait(["K0", "K1"] if NQ == 2 else ["K0"])
        out.append(f"{MF} {v(nxt,16)}, {v(K0,4)}, {v(Qf[qq(u+1)],4)}, {v(C[qq(u+1)],16)}")
        if qq(u + 1) == NQ - 1: reload(K0, tl(u + 1) + 1, 0, "K0")
        cvt(1); exp(6); out += dm[8:9]; exp(7); exp(8); cvt(2)
        wait(["K1"])
        out.append(f"{MF} {v(nxt,16)}, {v(K1,4)}, {v(Qf[qq(u+1)]+4,4)}, {v(nxt,16)}")
        if qq(u + 1) == NQ - 1: reload(K1, tl(u + 1) + 1, 1, "K1")
        exp(9); cvt(3); exp(10); out += dm[9:10]; exp(11); cvt(4); exp(12)
        wait(["V0"])
        out.append(f"{MF} {v(O[qq(u)],16)}, {v(V0,4)}, {v(P,4)}, {v(O[qq(u)],16)}")
        if qq(u) == NQ - 1: reload(V0, tl(u) + 1, 2, "V0")
        if ph == chk_at - 1:
            out.append(f"ds_read_b32 v{vPG}, v{vPR}"); q.issue("PG")
        cvt(5); exp(13); out += dm[10:]; exp(14); exp(15); cvt(6); cvt(7)
    q = Q("lgkm", 15)
    dummy = []
    for u in range(16 * NQ): unit(dummy, q, u)
    body = []
    for u in range(16 * NQ): unit(body, q, u)
    a(".p2align 6")
    a.label(f"{name}_aloop")
    for ln in body: a(ln)
    a(f"s_sub_u32 s{sIT}, s{sIT}, 1")
    a(f"s_cmp_lg_u32 s{sIT}, 0")
    a(f"s_cbranch_scc1 {name}_aloop")
    ql = NQ - 1
    a("s_waitcnt lgkmcnt(0)")
    a(f"{MF} {v(O[ql],16)}, {v(V1,4)}, {v(P+4,4)}, {v(O[ql],16)}")
    a(f"v_smfmac_f32_16x16x64_bf16 {v(LA[ql],4)}, {v(SEL,4)}, {v(P,8)}, v{vIDX}")
    a("s_nop 15")
    for qi in range(NQ):
        a(f"v_add_f32 v{LA[qi]}, v{LA[qi]}, v{LA[qi]+1}")
        a(f"v_mov_b32 v{vT0}, {f32(2.0**40)}")
        a(f"v_cmp_nle_f32 vcc, v{LA[qi]}, v{vT0}")
        a("s_nop 1")
        a(f"s_cbranch_vccz {name}_ok{qi}")
        gen_fallback(a, name, qi, Qf[qi], C[qi], O[qi], LA[qi], S, P, SEL, vIDX, vL16, vT0, vT1, rowmax, xhalf_max)
        a.label(f"{name}_ok{qi}")
        a(f"v_rcp_f32 v{vT0}, v{LA[qi]}")
        a("s_nop 0")
        for r in range(16): a(f"v_mul_f32 v{O[qi]+r}, v{O[qi]+r}, v{vT0}")
        for i in range(8): a(f"v_cvt_pk_bf16_f32 v{S[1]+8*qi+i}, v{O[qi]+2*i}, v{O[qi]+2*i+1}")
        for f in range(2):
            a(f"s_add_u32 s{sT1}, s{sOO}, {qi*8192 + f*4096}")
            a(f"buffer_store_dwordx4 {v(S[1]+8*qi+4*f,4)}, v{vL16}, s[{SW}:{SW+3}], s{sT1} offen {ostflag}")
    if fused:
        a("s_waitcnt vmcnt(0)")
        a(f"s_lshl_b32 s{sT0}, s{sPASS}, 4")
        a(f"s_add_u32 s{sT0}, s{sT0}, s{sAMT}")
        a(f"s_lshl_b32 s{sT0}, s{sT0}, 2")
        a(f"v_mov_b32 v{vT0}, 1")
        a(f"v_lshlrev_b32 v{vT1}, 8, v0")
        a(f"buffer_atomic_add v{vT0}, v{vT1}, s[{SD}:{SD+3}], s{sT0} offen sc1")
    if NP == 2:
        a(f"s_add_u32 s{sPASS}, s{sPASS}, 1")
        a(f"s_add_u32 s{sOO}, s{sOO}, {16*8192}")
        a("s_nop 1")
        for r in range(8): a(f"v_mov_b32 v{Qf[0]+r}, v{QN+r}")
        a(f"s_cmp_lt_u32 s{sPASS}, 2")
        a(f"s_cbranch_scc1 {name}_pass")
    ST.mark(a, 2)
    a(f"s_branch {name}_attdone")
    for (lb,) in slow:
        a.label(lb)
        a(f"s_mov_b32 s{sSPIN}, 0")
        a.label(lb + "_l")
        a(f"ds_read_b32 v{vPG}, v{vPR}")
        a(f"s_add_u32 s{sSPIN}, s{sSPIN}, 1")
        a(f"s_cmp_gt_u32 s{sSPIN}, 0x400000")
        a(f"s_cbranch_scc1 {lb}_ret")
        a("s_waitcnt lgkmcnt(0)")
        a(f"v_cmp_gt_u32 vcc, s{sTGT}, v{vPG}")
        a("s_nop 1")
        a(f"s_cbranch_vccnz {lb}_l")
        a(f"s_branch {lb}_ret")
    a.label(f"{name}_attdone")

def gen_fallback(a, name, qi, Qr, C, O, LA, S, P, SEL, vIDX, vL16, vT0, vT1, rowmax, xhalf_max):
    MF = "v_mfma_f32_32x32x16_bf16"
    F = 192
    vM = 10
    S0 = 208
    a(f"v_mov_b32 v{vM}, 0xff800000")
    a(f"s_mov_b32 s{sT2}, {KV_OFF}")
    a.label(f"{name}_fb1_{qi}")
    for f in range(2):
        a(f"buffer_load_dwordx4 {v(F+4*f,4)}, v{vL16}, s[{SW}:{SW+3}], s{sT2} offen offset:{f*1024}")
    a("s_waitcnt vmcnt(0)")
    a(f"{MF} {v(S0,16)}, {v(F,4)}, {v(Qr,4)}, 0")
    a(f"{MF} {v(S0,16)}, {v(F+4,4)}, {v(Qr+4,4)}, {v(S0,16)}")
    a("s_nop 15")
    rowmax(S0, vT0)
    a(f"v_max_f32 v{vM}, v{vM}, v{vT0}")
    a(f"s_add_u32 s{sT2}, s{sT2}, 4096")
    a(f"s_cmp_lt_u32 s{sT2}, {KV_OFF + KV_SIZE}")
    a(f"s_cbranch_scc1 {name}_fb1_{qi}")
    xhalf_max(vM, vT1)
    for r in range(16): a(f"v_sub_f32 v{C+r}, 0, v{vM}")
    for r in range(16): a(f"v_mov_b32 v{O+r}, 0")
    for r in range(4): a(f"v_mov_b32 v{LA+r}, 0")
    a(f"s_mov_b32 s{sT2}, {KV_OFF}")
    a.label(f"{name}_fb2_{qi}")
    for f in range(4):
        a(f"buffer_load_dwordx4 {v(F+4*f,4)}, v{vL16}, s[{SW}:{SW+3}], s{sT2} offen offset:{f*1024}")
    a("s_waitcnt vmcnt(0)")
    a(f"{MF} {v(S0,16)}, {v(F,4)}, {v(Qr,4)}, {v(C,16)}")
    a(f"{MF} {v(S0,16)}, {v(F+4,4)}, {v(Qr+4,4)}, {v(S0,16)}")
    a("s_nop 15")
    for r in range(16): a(f"v_exp_f32 v{S0+r}, v{S0+r}")
    a("s_nop 0")
    for i in range(8): a(f"v_cvt_pk_bf16_f32 v{P+i}, v{S0+2*i}, v{S0+2*i+1}")
    a("s_nop 1")
    a(f"{MF} {v(O,16)}, {v(F+8,4)}, {v(P,4)}, {v(O,16)}")
    a(f"{MF} {v(O,16)}, {v(F+12,4)}, {v(P+4,4)}, {v(O,16)}")
    a(f"v_smfmac_f32_16x16x64_bf16 {v(LA,4)}, {v(SEL,4)}, {v(P,8)}, v{vIDX}")
    a("s_nop 7")
    a(f"s_add_u32 s{sT2}, s{sT2}, 4096")
    a(f"s_cmp_lt_u32 s{sT2}, {KV_OFF + KV_SIZE}")
    a(f"s_cbranch_scc1 {name}_fb2_{qi}")
    a("s_nop 15")
    a(f"v_add_f32 v{LA}, v{LA}, v{LA+1}")

GACC = 128
def gacc(nb, rb): return GACC + (rb * 2 + nb) * 16

def gen_gemm(a, name, NQ, fused):
    MF = "v_mfma_f32_32x32x16_bf16"
    vL16, vB0, vB1, vR0, vR1 = 1, 2, 3, 4, 5
    t0, t1, t2, t3 = 6, 7, 8, 9
    BF = [16, 24]
    AF = [32 + 16 * i for i in range(4)]
    GW = sT3
    a(f"s_sub_u32 s{GW}, s{sWAVE}, 4")
    a(f"v_lshlrev_b32 v{vL16}, 4, v0")
    a(f"v_lshrrev_b32 v{t0}, 3, v0")
    a(f"v_lshlrev_b32 v{t0}, 11, v{t0}")
    a(f"v_and_b32 v{t1}, 7, v0")
    a(f"v_bfe_u32 v{t2}, v0, 4, 1")
    a(f"v_lshlrev_b32 v{t2}, 2, v{t2}")
    a(f"v_xor_b32 v{t1}, v{t1}, v{t2}")
    a(f"v_lshl_add_u32 v{t0}, v{t1}, 4, v{t0}")
    a(f"s_lshl_b32 s{sT0}, s{sNT}, 7")
    a(f"s_lshl_b32 s{sT1}, s{GW}, 15")
    a(f"s_add_u32 s{sT0}, s{sT0}, s{sT1}")
    a(f"v_add_u32 v{vB0}, s{sT0}, v{t0}")
    a(f"v_add_u32 v{vB1}, {16384 - 1024}, v{vB0}")
    a(f"s_lshl_b32 s{sM0}, s{GW}, 13")
    a(f"s_add_u32 s{sM0}, s{sM0}, {LDS_GB}")
    a(f"s_mul_i32 s{sQO}, s{sMT}, {A2_MT}")
    a(f"s_lshl_b32 s{sT0}, s{GW}, 12")
    a(f"s_add_u32 s{sQO}, s{sQO}, s{sT0}")
    if A2_OFF: a(f"s_add_u32 s{sQO}, s{sQO}, {A2_OFF}")

    if not fused:
        order = list(range(18))
    elif NQ == 2:
        order = list(range(4, 18)) + [0, 1, 2, 3]
    else:
        order = list(range(4, 18)) + [0, 1, 2, 3]
    assert order == [(i + order[0]) % 18 for i in range(18)]
    def setup_li():
        o = []
        o.append(f"s_lshl_b32 s{sAO}, s{sLI}, 16")
        o.append(f"s_add_u32 s{sAO}, s{sAO}, s{sQO}")
        o.append(f"s_cmp_lt_u32 s{sLI}, 4")
        o.append(f"s_cselect_b32 s{SWC}, s{SWO}, s{SW2}")
        o.append(f"s_cselect_b32 s{SWC+1}, s{SWO+1}, s{SW2+1}")
        o.append(f"s_cselect_b32 s{SWC+2}, s{SWO+2}, s{SW2+2}")
        o.append(f"s_cselect_b32 s{sT0}, 0, 4")
        o.append(f"s_sub_u32 s{sBO}, s{sLI}, s{sT0}")
        o.append(f"s_lshl_b32 s{sBO}, s{sBO}, 19")
        o.append(f"s_add_u32 s{sLI}, s{sLI}, 1")
        o.append(f"s_cmp_eq_u32 s{sLI}, 18")
        o.append(f"s_cselect_b32 s{sLI}, 0, s{sLI}")
        return o
    aflag = "sc1" if fused else ""
    def ldB(i):
        return [f"s_add_u32 m0, s{sM0}, {i*2048}",
                f"s_add_u32 s{sT1}, s{sBO}, {i*131072}",
                f"buffer_load_dwordx4 v{vB0}, s[{SWC}:{SWC+3}], s{sT1} offen lds",
                f"buffer_load_dwordx4 v{vB1}, s[{SWC}:{SWC+3}], s{sT1} offen offset:1024 lds",
                f"s_add_u32 s{sT2}, s{sAO}, {i*16384}"]
    def ldA(i, rb):
        return f"buffer_load_dwordx4 {v(AF[i]+4*rb,4)}, v{vL16}, s[{SW}:{SW+3}], s{sT2} offen offset:{rb*1024} {aflag}"
    a(f"s_mov_b32 s{sLI}, {order[0]}")
    for ln in setup_li(): a(ln)
    for i in range(4):
        for ln in ldB(i): a(ln)
        for rb in range(4): a(ldA(i, rb))
    a(f"v_bfe_u32 v{t0}, v0, 4, 1")
    a(f"v_and_b32 v{t2}, 3, v0")
    a(f"v_lshlrev_b32 v{t0}, 5, v{t0}")
    a(f"v_lshl_add_u32 v{t0}, v{t2}, 3, v{t0}")
    a(f"v_bfe_u32 v{t2}, v0, 2, 2")
    a(f"v_lshrrev_b32 v{t1}, 5, v0")
    a(f"v_lshl_add_u32 v{t1}, v{t1}, 2, v{t2}")
    a(f"v_bfe_u32 v{t3}, v0, 3, 1")
    a(f"v_lshlrev_b32 v{t3}, 6, v{t3}")
    a(f"v_xor_b32 v{t3}, v{t3}, v{t0}")
    a(f"v_lshl_add_u32 v{t3}, v{t1}, 7, v{t3}")
    a(f"v_add_u32 v{vR0}, s{sM0}, v{t3}")
    a(f"v_xor_b32 v{vR1}, 64, v{vR0}")
    for r in range(GACC, 256): a(f"v_mov_b32 v{r}, 0")
    a("s_barrier")
    def rdB(i):
        b = BF[i % 2]
        return [f"ds_read_b64_tr_b16 {v(b+4*nb+2*j,2)}, v{vR0+nb} offset:{(i%4)*2048 + j*1024}" for nb in range(2) for j in range(2)]
    a("s_waitcnt vmcnt(22)")
    ST.mark(a, 1)
    for ln in rdB(0): a(ln)

    def step(i, load, last_iter):
        if load: a("s_waitcnt vmcnt(16) lgkmcnt(0)")
        else:
            rem = {0: 16, 1: 10, 2: 4, 3: 0}[i]
            a(f"s_waitcnt vmcnt({rem}) lgkmcnt(0)")
        rds = rdB(i + 1) if not (last_iter and i == 3) else []
        lb = ldB(i) if load else []
        k = 0
        for rb in range(4):
            for nb in range(2):
                c = v(gacc(nb, rb), 16)
                a(f"{MF} {c}, {v(BF[i%2]+4*nb,4)}, {v(AF[i]+4*rb,4)}, {c}")
                if k == 0:
                    for ln in rds: a(ln)
                    for ln in lb: a(ln)
                if nb == 1 and load: a(ldA(i, rb))
                k += 1
    a(f"s_mov_b32 s{sIT}, 17")
    a(".p2align 6")
    a.label(f"{name}_gloop")
    if fused:
        a(f"s_cmp_lt_u32 s{sLI}, 4")
        a(f"s_cbranch_scc0 {name}_gnow")
        if NQ == 1:
            a(f"s_lshr_b32 s{sT0}, s{sLI}, 1")
            a(f"s_lshl_b32 s{sT0}, s{sT0}, 4")
            a(f"s_add_u32 s{sT0}, s{sT0}, s{sMT}")
        else:
            a(f"s_mov_b32 s{sT0}, s{sMT}")
        a(f"s_lshl_b32 s{sT0}, s{sT0}, 2")
        a(f"s_mov_b32 s{sSPIN}, 0")
        a(f"v_mov_b32 v{t0}, 0")
        a.label(f"{name}_gpoll")
        a(f"buffer_load_dword v{t1}, v{t0}, s[{SD}:{SD+3}], s{sT0} offen sc1")
        a(f"s_add_u32 s{sSPIN}, s{sSPIN}, 1")
        a(f"s_cmp_gt_u32 s{sSPIN}, 0x100000")
        a(f"s_cbranch_scc1 {name}_gnow")
        a("s_waitcnt vmcnt(0)")
        a(f"v_cmp_gt_u32 vcc, 64, v{t1}")
        a("s_nop 1")
        a(f"s_cbranch_vccz {name}_gnow")
        a("s_sleep 4")
        a(f"s_branch {name}_gpoll")
        a.label(f"{name}_gnow")
    for ln in setup_li(): a(ln)
    for i in range(4): step(i, True, False)
    a(f"s_sub_u32 s{sIT}, s{sIT}, 1")
    a(f"s_cmp_lg_u32 s{sIT}, 0")
    a(f"s_cbranch_scc1 {name}_gloop")
    for i in range(4): step(i, False, True)
    ST.mark(a, 2)

def gen_final(a, name):
    vX, vB2, vOA, vRA = 96, 104, 108, 110
    a(f"v_lshrrev_b32 v2, 3, v0")
    a(f"v_and_b32 v3, 7, v0")
    a(f"s_lshl_b32 s{sT0}, s{sMT}, 7")
    a(f"s_lshl_b32 s{sT1}, s{sWAVE}, 4")
    a(f"s_add_u32 s{sT0}, s{sT0}, s{sT1}")
    a(f"s_lshl_b32 s{sT0}, s{sT0}, 11")
    a(f"s_lshl_b32 s{sT2}, s{sNT}, 7")
    a(f"s_add_u32 s{sT0}, s{sT0}, s{sT2}")
    a(f"s_add_u32 s{sT1}, s{sT0}, 16384")
    a(f"v_lshlrev_b32 v4, 4, v3")
    a(f"v_lshl_add_u32 v{vOA}, v2, 11, v4")
    a(f"buffer_load_dwordx4 {v(vX,4)}, v{vOA}, s[{SX}:{SX+3}], s{sT0} offen")
    a(f"buffer_load_dwordx4 {v(vX+4,4)}, v{vOA}, s[{SX}:{SX+3}], s{sT1} offen")
    a(f"buffer_load_dwordx4 {v(vB2,4)}, v4, s[{SB2}:{SB2+3}], s{sT2} offen")
    a(f"v_mul_u32_u24 v{vRA}, {RED_STRIDE}, v2")
    a(f"v_lshl_add_u32 v{vRA}, v3, 5, v{vRA}")
    a(f"s_mul_i32 s{sT3}, s{sWAVE}, {16*RED_STRIDE}")
    a(f"v_add_u32 v{vRA}, s{sT3}, v{vRA}")
    a(f"v_add_u32 v{vRA+1}, {2*RED_PART}, v{vRA}")
    a("s_waitcnt vmcnt(3) lgkmcnt(0)")
    a("s_barrier")
    a(f"s_cmp_lt_u32 s{sWAVE}, 4")
    a(f"s_cbranch_scc1 {name}_fin2")
    a(f"v_and_b32 v2, 31, v0")
    a(f"v_mul_u32_u24 v2, {RED_STRIDE}, v2")
    a(f"v_lshrrev_b32 v3, 5, v0")
    a(f"v_lshl_add_u32 v2, v3, 4, v2")
    a(f"s_sub_u32 s{sT3}, s{sWAVE}, 4")
    a(f"s_mul_i32 s{sT3}, s{sT3}, {RED_PART}")
    a(f"v_add_u32 v2, s{sT3}, v2")
    for rb in range(4):
        for nb in range(2):
            for g in range(4):
                a(f"ds_write_b128 v2, {v(gacc(nb,rb)+4*g,4)} offset:{rb*32*RED_STRIDE + nb*128 + g*32}")
    a("s_waitcnt lgkmcnt(0)")
    a.label(f"{name}_fin2")
    a("s_barrier")
    D = 16
    for rg in range(2):
        for p in range(4):
            for hh in range(2):
                a(f"ds_read_b128 {v(D + rg*32 + p*8 + hh*4, 4)}, v{vRA + p//2} offset:{(p%2)*RED_PART + rg*8*RED_STRIDE + hh*16}")
    a("s_waitcnt vmcnt(0)")
    for i in range(4):
        a(f"v_lshlrev_b32 v{80+2*i}, 16, v{vB2+i}")
        a(f"v_and_b32 v{80+2*i+1}, 0xffff0000, v{vB2+i}")
    for rg in range(2):
        for i in range(4):
            a(f"v_lshlrev_b32 v{88+2*i}, 16, v{vX+4*rg+i}")
            a(f"v_and_b32 v{88+2*i+1}, 0xffff0000, v{vX+4*rg+i}")
        for i in range(0, 8, 2):
            a(f"v_pk_add_f32 {v(88+i,2)}, {v(88+i,2)}, {v(80+i,2)}")
        a(f"s_waitcnt lgkmcnt({8 if rg == 0 else 0})")
        b = D + rg * 32
        for i in range(0, 8, 2):
            a(f"v_pk_add_f32 {v(b+i,2)}, {v(b+i,2)}, {v(b+8+i,2)}")
            a(f"v_pk_add_f32 {v(b+16+i,2)}, {v(b+16+i,2)}, {v(b+24+i,2)}")
        for i in range(0, 8, 2):
            a(f"v_pk_add_f32 {v(b+i,2)}, {v(b+i,2)}, {v(b+16+i,2)}")
        for i in range(0, 8, 2):
            a(f"v_pk_add_f32 {v(b+i,2)}, {v(b+i,2)}, {v(88+i,2)}")
        for i in range(4):
            a(f"v_cvt_pk_bf16_f32 v{b+8+i}, v{b+2*i}, v{b+2*i+1}")
        a(f"buffer_store_dwordx4 {v(b+8,4)}, v{vOA}, s[{SO}:{SO+3}], s{sT0 if rg == 0 else sT1} offen")
    ST.flush(a, 3, SW, sWAVE, ST_OFF)
```

```python
A2_OFF = 0
A2_MT = 288 * 4096
A2_SIZE = 16 * A2_MT
QF_OFF = A2_SIZE
QF_MT = 64 * 4096
QF_SIZE = 16 * QF_MT
KV_OFF = QF_OFF + QF_SIZE
KV_SIZE = 64 * 4096
RS_OFF = KV_OFF + KV_SIZE
RS_SIZE = 4 * 8192
CS_OFF = RS_OFF + RS_SIZE
CS_SIZE = 32 * 8 * 1024
ST_OFF = CS_OFF + CS_SIZE
ST_SIZE = 4 * 256 * 8 * 64
WS_USED = ST_OFF + ST_SIZE
KA = dict(x=0, wq=8, wk=16, wv=24, wo=32, bx=40, w1=48, b1=56, w2=64, b2=72, out=80, dbg=88, ws=96)
```

```python
import sys, os
sys.path.insert(0, os.path.dirname(__file__))
from k2 import gen_k2
from k3 import gen_k3

HEADER = """; Kernarg layout for this problem (104 bytes, ptrs only, base s[0:1]):
"""

def kd(name, vgpr=256, sgpr=102):
    return f""".p2align 6
.amdhsa_kernel {name}
  .amdhsa_next_free_vgpr {vgpr}
  .amdhsa_next_free_sgpr {sgpr}
  .amdhsa_accum_offset {vgpr}
  .amdhsa_group_segment_fixed_size 0
  .amdhsa_kernarg_size 104
  .amdhsa_user_sgpr_count 2
  .amdhsa_user_sgpr_kernarg_segment_ptr 1
  .amdhsa_system_sgpr_workgroup_id_x 1
.end_amdhsa_kernel"""

def build(kernels, path):
    out = [HEADER.rstrip()]
    for name, _, grid, block, lds in kernels:
        out.append(f"; @launch kernel={name} grid=({grid},1,1) block=({block},1,1) lds={lds}")
    out.append('.amdgcn_target "amdgcn-amd-amdhsa--gfx950"\n.text')
    seen = set()
    for name, text, *_ in kernels:
        if name not in seen:
            out.append(text); seen.add(name)
    out.append('.section .rodata,"a"')
    for name in dict.fromkeys(k[0] for k in kernels):
        out.append(kd(name))
    open(path, "w").write("\n".join(out) + "\n")

if __name__ == "__main__":
    cfg = sys.argv[1] if len(sys.argv) > 1 else "k2"
    path = sys.argv[2] if len(sys.argv) > 2 else "out.s"
    ks = []
    st = "stamps" in sys.argv
    NQ = int(os.environ.get("NQ", "1"))
    ks.append(("g1_kernel", gen_k2("g1_kernel", stamps=st, stflag=os.environ.get("STFLAG", "sc1")), 256, 512, 163840))
    if cfg == "v1":
        ks.append(("att_kernel", gen_k3("att_kernel", True, False, NQ, st, 1), 256, 512, 163840))
        ks.append(("g2_kernel", gen_k3("g2_kernel", False, True, NQ, st, 2), 256, 512, 163840))
    if cfg == "v2":
        ks.append(("k3_kernel", gen_k3("k3_kernel", True, True, NQ, st, 1), 256, 512, 163840))
    for i in range(int(os.environ.get("EMPTY", "0"))):
        ks.append(("nop_kernel", ".globl nop_kernel\n.p2align 8\n.type nop_kernel,@function\nnop_kernel:\n  s_endpgm", 256, 512, 0))
    build(ks, path)
```

```python
import math
from asmlib import *
from layout import *

LDS_A = 0
LDS_B = 98304
LDS_M = 159744
SLOT_B = 20480
QSCALE = (32 ** -0.5) * math.log2(math.e)
G_C0 = -2.0 * math.sqrt(2.0 / math.pi) * math.log2(math.e)
G_C1 = G_C0 * 0.044715

SX, SB, SS, SW, SB1, SD = 24, 28, 32, 36, 40, 44
sMT, sCW, sFLIP, sCBM, sCBS, sLDW, sLDS, sWAVE, sTYPE = 48, 49, 50, 51, 52, 53, 54, 55, 56
sT0, sT1, sT2, sT3, sT4, sT5 = 57, 58, 59, 60, 61, 62
sPH, sKT, sSA, sSB, sOA, sOB, sOS, sSTB, sSTS = 63, 64, 65, 66, 67, 68, 69, 70, 71
sCSL = 74
sWI = 75
sPFM = 74
import os
EXP = os.environ.get('EXP', '')

def srd(a, base, ptr, size):
    a(f"s_mov_b32 s{base}, s{ptr}")
    a(f"s_mov_b32 s{base+1}, s{ptr+1}")
    a(f"s_mov_b32 s{base+2}, {size}")
    a(f"s_mov_b32 s{base+3}, 0x20000")

ST = Stamps(False)
FUSED = False
def gen_k2(name, stflag="sc1", stamps=False, phase2=None):
    global ST, FUSED
    FUSED = phase2 is not None
    ST = Stamps(stamps, 76, 0)
    a = Asm()
    a(f".globl {name}\n.p2align 8\n.type {name},@function")
    a.label(name)
    a("s_cmp_ge_u32 s2, 256")
    a(f"s_cbranch_scc1 {name}_exit")
    ST.mark(a, 0)
    a("s_load_dwordx8 s[8:15], s[0:1], 0")
    a("s_load_dwordx4 s[16:19], s[0:1], 48")
    a("s_load_dwordx4 s[20:23], s[0:1], 88")
    a("s_load_dwordx2 s[4:5], s[0:1], 32")
    a("s_load_dwordx2 s[6:7], s[0:1], 64")
    a("s_load_dwordx4 s[96:99], s[0:1], 72")
    a("v_lshrrev_b32 v1, 6, v0")
    a("v_and_b32 v0, 63, v0")
    a(f"v_readfirstlane_b32 s{sWAVE}, v1")
    a(f"s_and_b32 s{sT0}, s2, 7")
    a(f"s_lshr_b32 s{sT1}, s2, 3")
    a(f"s_and_b32 s{sMT}, s{sT0}, 1")
    a(f"s_lshl_b32 s{sMT}, s{sMT}, 2")
    a(f"s_and_b32 s{sT2}, s{sT1}, 3")
    a(f"s_add_u32 s{sMT}, s{sMT}, s{sT2}")
    a(f"s_lshr_b32 s{sT0}, s{sT0}, 1")
    a(f"s_lshr_b32 s{sT2}, s{sT1}, 2")
    a(f"s_mul_i32 s{sCW}, s{sT0}, 6")
    a(f"s_lshl_b32 s{sT0}, s{sT0}, 1")
    a(f"s_add_u32 s{sT0}, s{sT0}, 18")
    a(f"s_cmp_lt_u32 s{sT2}, 6")
    a(f"s_cselect_b32 s{sCW}, s{sCW}, s{sT0}")
    a(f"s_add_u32 s{sCW}, s{sCW}, s{sT2}")
    a(f"s_lshr_b32 s{sT0}, s{sCW}, 2")
    a(f"s_and_b32 s{sT1}, s{sCW}, 3")
    a(f"s_mul_i32 s{sT0}, s{sT0}, 18")
    a(f"s_lshl_b32 s{sCBM}, s{sT1}, 2")
    a(f"s_add_u32 s{sCBM}, s{sCBM}, s{sT0}")
    a(f"s_lshr_b32 s{sCBS}, s{sT1}, 1")
    a(f"s_add_u32 s{sCBS}, s{sCBS}, s{sT0}")
    a(f"s_add_u32 s{sCBS}, s{sCBS}, 16")
    a(f"s_and_b32 s{sFLIP}, s{sT1}, 1")
    a(f"s_mov_b32 s{sTYPE}, 0")
    a(f"s_mov_b32 s{sLDW}, 7168")
    a(f"s_mov_b32 s{sLDS}, 7168")
    a("s_waitcnt lgkmcnt(0)")
    srd(a, SX, 8, 4194304)
    srd(a, SB, 16, 7340032)
    srd(a, SS, 16, 7340032)
    srd(a, SW, 22, WS_USED)
    srd(a, SB1, 18, 7168)
    srd(a, SD, 20, 256)
    a(f"s_cmp_lt_u32 s{sCW}, 24")
    a(f"s_cbranch_scc1 {name}_dec")
    a(f"s_mov_b32 s{sFLIP}, 0")
    a(f"s_cmp_eq_u32 s{sCW}, 31")
    a(f"s_cbranch_scc0 {name}_nh4")
    a(f"s_mov_b32 s{sCBM}, 108")
    a(f"s_mov_b32 s{sCBS}, 108")
    a(f"s_branch {name}_dec")
    a.label(f"{name}_nh4")
    a(f"s_sub_u32 s{sT0}, s{sCW}, 24")
    a(f"s_lshl_b32 s{sCBM}, s{sT0}, 2")
    a(f"s_mov_b32 s{sCBS}, s{sCW}")
    a(f"s_mov_b32 s{sTYPE}, 1")
    a(f"s_mov_b32 s{sLDW}, 2048")
    a(f"s_mov_b32 s{sLDS}, 2048")
    a(f"s_mov_b32 s{SB}, s10\ns_mov_b32 s{SB+1}, s11\ns_mov_b32 s{SB+2}, 2097152")
    a(f"s_mov_b32 s{SS}, s10\ns_mov_b32 s{SS+1}, s11\ns_mov_b32 s{SS+2}, 2097152")
    a(f"s_cmp_eq_u32 s{sCW}, 30")
    a(f"s_cbranch_scc0 {name}_dec")
    a(f"s_mov_b32 s{sTYPE}, 2")
    a(f"s_mov_b32 s{sCBM}, 30")
    a(f"s_mov_b32 s{sCBS}, 0")
    a(f"s_mov_b32 s{sLDS}, 64")
    a(f"s_mov_b32 s{SS}, s12\ns_mov_b32 s{SS+1}, s13\ns_mov_b32 s{SS+2}, 65536")
    a(f"s_cmp_ge_u32 s{sWAVE}, 6")
    a(f"s_cbranch_scc0 {name}_dec")
    a(f"s_mov_b32 s{sLDW}, 64")
    a(f"s_mov_b32 s{SB}, s14\ns_mov_b32 s{SB+1}, s15\ns_mov_b32 s{SB+2}, 65536")
    a.label(f"{name}_dec")
    a(f"s_cmp_ge_u32 s{sWAVE}, 4")
    a(f"s_cbranch_scc1 {name}_loader")
    gen_compute(a, name, stflag)
    a.label(f"{name}_loader")
    gen_loader(a, name)
    if phase2: phase2(a, name, ST)
    a.label(f"{name}_exit")
    a("s_endpgm")
    return a.text()

def gen_loader(a, name):
    vA = 2
    vB = 10
    vS = 14
    vC = 16
    vCA = 26
    vD = 32
    t0, t1, t2, t3 = 96, 97, 98, 99
    LW = sT5
    a(f"s_sub_u32 s{LW}, s{sWAVE}, 4")
    if not FUSED: ST.mark(a, 1)
    a(f"v_lshrrev_b32 v{t0}, 3, v0")
    a(f"v_and_b32 v{t1}, 7, v0")
    a(f"v_lshrrev_b32 v{t2}, 4, v0")
    a(f"v_xor_b32 v{t1}, v{t1}, v{t2}")
    a(f"v_lshlrev_b32 v{t0}, 11, v{t0}")
    a(f"v_lshl_add_u32 v{t3}, v{t1}, 4, v{t0}")
    a(f"s_lshl_b32 s{sT0}, s{sMT}, 8")
    a(f"s_lshl_b32 s{sT1}, s{LW}, 6")
    a(f"s_add_u32 s{sT0}, s{sT0}, s{sT1}")
    a(f"s_lshl_b32 s{sT0}, s{sT0}, 11")
    a(f"s_lshl_b32 s{sT1}, s{sFLIP}, 16")
    for q in range(8):
        a(f"s_xor_b32 s{sT2}, s{sT1}, {q*16384}")
        a(f"s_add_u32 s{sT2}, s{sT2}, s{sT0}")
        a(f"s_sub_u32 s{sT2}, s{sT2}, {(q%4)*1024}")
        if q % 2 == 0:
            a(f"v_add_u32 v{vA+q}, s{sT2}, v{t3}")
        else:
            a(f"v_xor_b32 v{vA+q}, 64, v{t3}")
            a(f"v_add_u32 v{vA+q}, s{sT2}, v{vA+q}")
    a(f"v_lshrrev_b32 v{t0}, 3, v0")
    a(f"v_mul_lo_u32 v{t0}, v{t0}, s{sLDW}")
    a(f"v_and_b32 v{t1}, 7, v0")
    a(f"v_bfe_u32 v{t2}, v0, 4, 1")
    a(f"v_lshlrev_b32 v{t2}, 2, v{t2}")
    a(f"v_xor_b32 v{t1}, v{t1}, v{t2}")
    a(f"v_lshl_add_u32 v{t3}, v{t1}, 4, v{t0}")
    a(f"s_and_b32 s{sT0}, s{LW}, 1")
    a(f"s_lshl_b32 s{sT0}, s{sT0}, 5")
    a(f"s_mul_i32 s{sT0}, s{sT0}, s{sLDW}")
    a(f"s_lshl_b32 s{sT1}, s{sCBM}, 6")
    a(f"s_add_u32 s{sT0}, s{sT0}, s{sT1}")
    a(f"s_lshr_b32 s{sT1}, s{LW}, 1")
    a(f"s_lshl_b32 s{sT1}, s{sT1}, 7")
    a(f"s_add_u32 s{sT0}, s{sT0}, s{sT1}")
    a(f"s_lshl_b32 s{sT1}, s{sLDW}, 3")
    a(f"s_sub_u32 s{sT1}, s{sT1}, 1024")
    for t in range(4):
        a(f"v_add_u32 v{vB+t}, s{sT0}, v{t3}")
        a(f"s_add_u32 s{sT0}, s{sT0}, s{sT1}")
    a(f"s_cmp_eq_u32 s{sLDW}, 64")
    a(f"s_cbranch_scc0 {name}_ld_nv")
    a(f"s_and_b32 s{sT0}, s{LW}, 1")
    a(f"s_lshl_b32 s{sT0}, s{sT0}, 12")
    a(f"v_lshlrev_b32 v{t0}, 4, v0")
    for t in range(4):
        a(f"v_add_u32 v{vB+t}, s{sT0}, v{t0}")
    a.label(f"{name}_ld_nv")
    a(f"v_lshrrev_b32 v{t0}, 2, v0")
    a(f"s_lshl_b32 s{sT0}, s{LW}, 4")
    a(f"v_add_u32 v{t0}, s{sT0}, v{t0}")
    a(f"v_mul_lo_u32 v{t0}, v{t0}, s{sLDS}")
    a(f"v_and_b32 v{t1}, 3, v0")
    a(f"v_lshl_add_u32 v{t0}, v{t1}, 4, v{t0}")
    a(f"s_lshl_b32 s{sT0}, s{sCBS}, 6")
    a(f"v_add_u32 v{vS}, s{sT0}, v{t0}")
    if 'norot' not in EXP: a(f"s_lshl_b32 s{sKT}, s{sMT}, 1")
    else: a(f"s_mov_b32 s{sKT}, 0")
    a(f"s_lshl_b32 s{sSTB}, s{sLDW}, 6")
    a(f"s_lshl_b32 s{sSTS}, s{sLDS}, 6")
    a(f"s_mul_i32 s{sSA}, s{LW}, 24576")
    a(f"s_lshl_b32 s{sSB}, s{LW}, 12")
    a(f"s_add_u32 s{sSB}, s{sSB}, {LDS_B}")
    a(f"s_mul_i32 s{sT4}, s{LW}, 3072")
    a(f"s_sub_u32 s{sT4}, 16384, s{sT4}")
    a(f"s_mov_b32 s{sT3}, 0")

    A0 = a
    def issue(fill=None):
        a0 = A0
        fill = list(fill or [])
        per = -(-len(fill) // 11) if fill else 0
        cnt = [0]
        def a(ln):
            a0(ln)
            if ln.startswith("buffer_load"):
                cnt[0] += 1
                if cnt[0] >= 2:
                    for _ in range(per):
                        if fill: a0(fill.pop(0))
        a(f"s_lshl_b32 s{sOA}, s{sKT}, 7")
        a(f"s_mul_i32 s{sOB}, s{sKT}, s{sSTB}")
        a(f"s_mul_i32 s{sOS}, s{sKT}, s{sSTS}")
        a(f"s_mov_b32 m0, s{sSB}")
        a(f"s_add_u32 s{sKT}, s{sKT}, 1")
        for t in range(4):
            a(f"buffer_load_dwordx4 v{vB+t}, s[{SB}:{SB+3}], s{sOB} offen offset:{t*1024} lds")
        a(f"s_mov_b32 m0, s{sSA}")
        a(f"s_and_b32 s{sKT}, s{sKT}, 15")
        for q in range(4):
            a(f"buffer_load_dwordx4 v{vA+q}, s[{SX}:{SX+3}], s{sOA} offen offset:{q*1024} lds")
        a(f"s_add_u32 m0, s{sSA}, 4096")
        a(f"s_add_u32 s{sT3}, s{sT3}, 1")
        for q in range(4, 8):
            a(f"buffer_load_dwordx4 v{vA+q}, s[{SX}:{SX+3}], s{sOA} offen offset:{(q%4)*1024} lds")
        a(f"s_add_u32 m0, s{sSB}, s{sT4}")
        a(f"s_add_u32 s{sSA}, s{sSA}, 8192")
        a(f"buffer_load_dwordx4 v{vS}, s[{SS}:{SS+3}], s{sOS} offen lds")
        a(f"s_add_u32 s{sSB}, s{sSB}, {SLOT_B}")
        a(f"s_cmp_eq_u32 s{sT3}, 3")
        a(f"s_cselect_b32 s{sT0}, 24576, 0")
        a(f"s_cselect_b32 s{sT1}, {3*SLOT_B}, 0")
        a(f"s_cselect_b32 s{sT3}, 0, s{sT3}")
        a(f"s_sub_u32 s{sSA}, s{sSA}, s{sT0}")
        a(f"s_sub_u32 s{sSB}, s{sSB}, s{sT1}")
        for ln in fill: a0(ln)

    if not FUSED: ST.mark(a, 2)
    issue()
    issue()
    if not FUSED: ST.mark(a, 3)
    g_, r_, c_, hf_ = 100, 101, 102, 103
    a(f"v_bfe_u32 v{g_}, v0, 4, 1")
    a(f"v_bfe_u32 v{r_}, v0, 2, 2")
    a(f"v_and_b32 v{c_}, 3, v0")
    a(f"v_lshrrev_b32 v{hf_}, 5, v0")
    a(f"v_lshlrev_b32 v{t0}, 5, v{g_}")
    a(f"v_lshl_add_u32 v{t0}, v{c_}, 3, v{t0}")
    a(f"v_lshl_add_u32 v{t1}, v{hf_}, 3, v{r_}")
    a(f"v_lshrrev_b32 v{t2}, 1, v{r_}")
    a(f"s_and_b32 s{sT0}, s{LW}, 1")
    a(f"v_xor_b32 v{t2}, s{sT0}, v{t2}")
    a(f"v_lshlrev_b32 v{t2}, 6, v{t2}")
    a(f"v_xor_b32 v{t2}, v{t2}, v{t0}")
    a(f"v_lshl_add_u32 v{t2}, v{t1}, 7, v{t2}")
    a(f"s_lshr_b32 s{sT0}, s{LW}, 1")
    a(f"s_lshl_b32 s{sT0}, s{sT0}, 13")
    a(f"v_add_u32 v{t2}, s{sT0}, v{t2}")
    a(f"v_lshl_add_u32 v{t3}, v{t1}, 6, v{t0}")
    for i in range(8):
        a(f"v_add_u32 v{vC+i}, {LDS_B + (i//2)*2048 + (i%2)*512}, v{t2}")
    a(f"s_cmp_eq_u32 s{sLDW}, 64")
    a(f"s_cbranch_scc0 {name}_ld_nv2")
    for i in range(8):
        a(f"v_add_u32 v{vC+i}, {LDS_B + 8192 + (i//2)*1024 + (i%2)*256}, v{t3}")
    a.label(f"{name}_ld_nv2")
    a(f"s_lshl_b32 s{sT0}, s{LW}, 10")
    a(f"v_add_u32 v{t3}, s{sT0}, v{t3}")
    for j in range(2):
        a(f"v_add_u32 v{vC+8+j}, {LDS_B + 16384 + j*256}, v{t3}")
    for i in range(4):
        a(f"v_mov_b32 v{vCA+i}, 0")
    a(f"s_mov_b32 s{sCSL}, 0")
    a(f"v_lshlrev_b32 v81, 2, v0")
    a("s_waitcnt vmcnt(13)")
    ST.mark(a, 1 if FUSED else 4)
    a("s_barrier")

    def cs_read():
        for i in range(10):
            a(f"ds_read_b64_tr_b16 v[{vD+2*i}:{vD+2*i+1}], v{vC+i}")
        a(f"s_add_u32 s{sCSL}, s{sCSL}, 1")
        a(f"s_cmp_eq_u32 s{sCSL}, 3")
        a(f"s_cselect_b32 s{sT0}, {3*SLOT_B}, 0")
        a(f"s_cselect_b32 s{sCSL}, 0, s{sCSL}")
        a(f"s_sub_u32 s{sT0}, {SLOT_B}, s{sT0}")
        for i in range(10):
            a(f"v_add_u32 v{vC+i}, s{sT0}, v{vC+i}")
    def cs_add(lst=False):
        o = []
        a = o.append
        a("s_waitcnt lgkmcnt(0)")
        for i in range(0 if 'nocs' in EXP else 10):
            b = 0 if i < 8 else 2
            for k in range(2):
                r = vD + 2 * i + k
                a(f"v_lshlrev_b32 v{t0}, 16, v{r}")
                a(f"v_and_b32 v{t1}, 0xffff0000, v{r}")
                a(f"v_add_f32 v{vCA+b}, v{vCA+b}, v{t0}")
                a(f"v_add_f32 v{vCA+b+1}, v{vCA+b+1}, v{t1}")
        if lst: return o
        for ln in o: A0(ln)

    vX = 64
    vP = 80
    cs_read()
    issue(cs_add(True))
    a(f"s_lshl_b32 s{sWI}, s2, 2")
    a(f"s_add_u32 s{sWI}, s{sWI}, s{LW}")
    nb_ = 0
    if 'norot' in EXP:
        nb_ += pf(a, 16, 192 * 7168, 5824, 144, t0)
        nb_ += pf(a, 10, 192 * 2048, 1664, 144, t0)
        nb_ += pf(a, 12, 0, 64, 144, t0)
        nb_ += pf(a, 14, 0, 64, 144, t0)
    a(f"s_lshl_b32 s{sT0}, s{sMT}, 8")
    a(f"s_lshl_b32 s{sT1}, s{sCW}, 3")
    a(f"s_add_u32 s{sT0}, s{sT0}, s{sT1}")
    a(f"s_lshl_b32 s{sT1}, s{LW}, 1")
    a(f"s_add_u32 s{sT2}, s{sT0}, s{sT1}")
    a(f"v_add_u32 v{g_}, s{sT2}, v{hf_}")
    a(f"v_lshlrev_b32 v{t0}, 11, v{g_}")
    a(f"v_and_b32 v{t1}, 31, v0")
    a(f"v_lshl_add_u32 v{t0}, v{t1}, 4, v{t0}")
    for i in range(4):
        a(f"buffer_load_dwordx4 v[{vX+4*i}:{vX+4*i+3}], v{t0}, s[{SX}:{SX+3}], 0 offen offset:{i*512}")
    a(f"s_mul_i32 s{sT0}, s2, {FLS}")
    a(f"s_add_u32 s{sT0}, s{sT0}, {FL_OFF}")
    a(f"v_lshlrev_b32 v{t0}, 2, v0")
    a(f"v_mov_b32 v147, 0")
    a(f"buffer_store_dword v147, v{t0}, s[{SW}:{SW+3}], s{sT0} offen sc1")
    nb_ += 5
    a(f"s_waitcnt vmcnt({13 + nb_}) lgkmcnt(0)")
    a("s_barrier")
    cs_read()
    issue(cs_add(True))
    a(f"s_waitcnt vmcnt({13 + nb_}) lgkmcnt(0)")
    a("s_barrier")
    a(f"s_mov_b32 s{sPH}, 2")
    a.label(f"{name}_ld_loop")
    cs_read()
    a(f"s_cmp_lt_u32 s{sPH}, 14")
    a(f"s_cbranch_scc0 {name}_ld_noiss")
    a(f"s_cmp_lt_u32 s{sPH}, 13")
    a(f"s_cbranch_scc1 {name}_ld_sp")
    a.label(f"{name}_ld_spret")
    issue(cs_add(True))
    a(f"s_cmp_eq_u32 s{sPH}, 3")
    a(f"s_cbranch_scc1 {name}_ld_rs")
    a.label(f"{name}_ld_rsret")
    a("s_waitcnt vmcnt(13) lgkmcnt(0)")
    a("s_barrier")
    a(f"s_add_u32 s{sPH}, s{sPH}, 1")
    a(f"s_branch {name}_ld_loop")
    a.label(f"{name}_ld_noiss")
    cs_add()
    a(f"s_cmp_eq_u32 s{sPH}, 15")
    a(f"s_cbranch_scc1 {name}_ld_fin")
    a("s_waitcnt vmcnt(0)")
    a("s_barrier")
    a(f"s_add_u32 s{sPH}, s{sPH}, 1")
    a(f"s_branch {name}_ld_loop")
    a.label(f"{name}_ld_fin")
    a(f"v_add_f32 v{vCA}, v{vCA}, v{vCA+1}")
    a(f"v_add_f32 v{vCA+2}, v{vCA+2}, v{vCA+3}")
    a(f"v_mov_b32 v{vCA+1}, v{vCA}")
    a(f"v_mov_b32 v{vCA+3}, v{vCA+2}")
    a(f"v_and_b32 v{t1}, 31, v0")
    a(f"s_lshl_b32 s{sT0}, s{LW}, 7")
    a(f"v_permlane32_swap_b32 v{vCA}, v{vCA+1}")
    a(f"v_permlane32_swap_b32 v{vCA+2}, v{vCA+3}")
    a(f"s_add_u32 s{sT0}, s{sT0}, {LDS_M}")
    a(f"v_lshlrev_b32 v{t1}, 2, v{t1}")
    a(f"v_add_u32 v{t1}, s{sT0}, v{t1}")
    a(f"v_add_f32 v{vCA}, v{vCA}, v{vCA+1}")
    a(f"v_add_f32 v{vCA+2}, v{vCA+2}, v{vCA+3}")
    a(f"ds_write_b32 v{t1}, v{vCA}")
    a(f"ds_write_b32 v{t1}, v{vCA+2} offset:512")
    a(f"v_mov_b32 v{t0}, 0")
    a(f"ds_write_b32 v{t1}, v{t0} offset:2048")
    a("s_waitcnt lgkmcnt(0)")
    a("s_barrier")
    if 'pfk2' in EXP:
        pf(a, 6, 0, 7168, 144, t0)
        pf(a, 4, 0, 2048, 144, t0)
    if FUSED:
        a(f"s_branch {name}_att")
    else:
        ST.flush(a, 5, SW, sWAVE, ST_OFF)
        a("s_endpgm")

    a.label(f"{name}_ld_sp")
    a(f"s_cmp_eq_u32 s{LW}, 0")
    a(f"s_cbranch_scc0 {name}_ld_spret")
    a(f"s_cmp_eq_u32 s{sPH}, 5")
    a(f"s_cbranch_scc0 {name}_ld_n4")
    a(f"s_and_b32 s{sT0}, s2, 3")
    a(f"s_lshl_b32 s{sT0}, s{sT0}, 3")
    a(f"s_lshl_b32 s{sT0}, 1, s{sT0}")
    a(f"s_and_b32 s{sT1}, s2, 0xfc")
    a(f"v_mov_b32 v{vP}, s{sT0}")
    a(f"v_lshlrev_b32 v{vP+1}, 8, v0")
    a(f"buffer_atomic_add v{vP}, v{vP+1}, s[{SD}:{SD+3}], s{sT1} offen sc1")
    a(f"s_lshl_b32 s{sT0}, s{sCBM}, 6")
    a(f"s_lshl_b32 s{sT1}, s{sCBS}, 6")
    a(f"s_sub_u32 s{sT1}, s{sT1}, 256")
    a(f"v_mov_b32 v{t1}, s{sT0}")
    a(f"v_mov_b32 v{t2}, s{sT1}")
    a(f"v_cmp_gt_u32 vcc, 32, v0")
    a("s_nop 1")
    a(f"v_cndmask_b32 v{t1}, v{t2}, v{t1}, vcc")
    a(f"v_lshl_add_u32 v{t1}, v0, 3, v{t1}")
    a(f"buffer_load_dwordx2 v[{vX}:{vX+1}], v{t1}, s[{SB1}:{SB1+3}], 0 offen")
    a(f"s_branch {name}_ld_spret")
    a.label(f"{name}_ld_n4")
    a(f"s_cmp_eq_u32 s{sPH}, 11")
    a(f"s_cbranch_scc0 {name}_ld_n10")
    a(f"v_lshlrev_b32 v{vP+1}, 2, v0")
    a(f"buffer_load_dword v{vP+2}, v{vP+1}, s[{SD}:{SD+3}], 0 offen sc1")
    a(f"v_lshlrev_b32 v{vX+4}, 16, v{vX}")
    a(f"v_and_b32 v{vX+5}, 0xffff0000, v{vX}")
    a(f"v_lshlrev_b32 v{vX+6}, 16, v{vX+1}")
    a(f"v_and_b32 v{vX+7}, 0xffff0000, v{vX+1}")
    a(f"v_lshlrev_b32 v{t0}, 4, v0")
    a(f"v_add_u32 v{t0}, {LDS_M}, v{t0}")
    a(f"ds_write_b128 v{t0}, v[{vX+4}:{vX+7}] offset:1024")
    a(f"s_branch {name}_ld_spret")
    a.label(f"{name}_ld_n10")
    a(f"s_cmp_eq_u32 s{sPH}, 12")
    a(f"s_cbranch_scc0 {name}_ld_spret")
    a(f"s_mov_b32 s{sT2}, 0")
    a.label(f"{name}_ld_poll")
    a(f"v_and_b32 v{vP+2}, 0x01010101, v{vP+2}")
    a(f"v_cmp_ne_u32 vcc, 0x01010101, v{vP+2}")
    a("s_nop 1")
    a(f"s_cbranch_vccz {name}_ld_spret")
    a("s_sleep 8")
    a(f"buffer_load_dword v{vP+2}, v{vP+1}, s[{SD}:{SD+3}], 0 offen sc1")
    a("s_waitcnt vmcnt(0)")
    a(f"s_add_u32 s{sT2}, s{sT2}, 1")
    a(f"s_cmp_lt_u32 s{sT2}, 20000")
    a(f"s_cbranch_scc1 {name}_ld_poll")
    a(f"s_branch {name}_ld_spret")

    a.label(f"{name}_ld_rs")
    vF = 104
    for i in range(16):
        a(f"v_lshlrev_b32 v{vF+2*i}, 16, v{vX+i}")
        a(f"v_and_b32 v{vF+2*i+1}, 0xffff0000, v{vX+i}")
    def reduce32(acc):
        for sh in (1, 2, 4, 8):
            a("s_nop 1")
            a(f"v_add_f32_dpp v{acc}, v{acc}, v{acc} row_ror:{sh} row_mask:0xf bank_mask:0xf")
        a(f"v_mov_b32 v{t3}, v{acc}")
        a("s_nop 1")
        a(f"v_permlane16_swap_b32 v{acc}, v{t3}")
        a("s_nop 1")
        a(f"v_add_f32 v{acc}, v{acc}, v{t3}")
    s0, s1 = 136, 137
    a(f"v_add_f32 v{s0}, v{vF}, v{vF+1}")
    a(f"v_add_f32 v{s1}, v{vF+2}, v{vF+3}")
    for i in range(4, 32, 2):
        a(f"v_add_f32 v{s0}, v{s0}, v{vF+i}")
        a(f"v_add_f32 v{s1}, v{s1}, v{vF+i+1}")
    a(f"v_add_f32 v{s0}, v{s0}, v{s1}")
    reduce32(s0)
    mean = 138
    a(f"v_mul_f32 v{mean}, {f32(1.0/1024)}, v{s0}")
    for i in range(32):
        a(f"v_sub_f32 v{vF+i}, v{vF+i}, v{mean}")
    a(f"v_mul_f32 v{s0}, v{vF}, v{vF}")
    a(f"v_mul_f32 v{s1}, v{vF+1}, v{vF+1}")
    for i in range(2, 32, 2):
        a(f"v_fmac_f32 v{s0}, v{vF+i}, v{vF+i}")
        a(f"v_fmac_f32 v{s1}, v{vF+i+1}, v{vF+i+1}")
    a(f"v_add_f32 v{s0}, v{s0}, v{s1}")
    reduce32(s0)
    var, mb, r_v, rs_v = 139, 140, 141, 142
    def rbf(r):
        a(f"v_cvt_pk_bf16_f32 v{r}, v{r}, v{r}")
        a(f"v_and_b32 v{r}, 0xffff0000, v{r}")
    a(f"v_mul_f32 v{var}, {f32(1.0/1024)}, v{s0}")
    a(f"v_mov_b32 v{mb}, v{mean}")
    rbf(mb)
    a(f"v_mov_b32 v{t0}, v{var}")
    rbf(t0)
    a(f"v_add_f32 v{t0}, {f32(1e-5)}, v{t0}")
    rbf(t0)
    a(f"v_sqrt_f32 v{t0}, v{t0}")
    a("s_nop 0")
    rbf(t0)
    a(f"v_rcp_f32 v{r_v}, v{t0}")
    a("s_nop 0")
    a(f"v_mul_f32 v{t1}, v{r_v}, v{r_v}")
    a(f"v_mul_f32 v{t1}, v{t1}, v{var}")
    rbf(t1)
    a(f"v_add_f32 v{t1}, {f32(1e-5)}, v{t1}")
    rbf(t1)
    a(f"v_sqrt_f32 v{t1}, v{t1}")
    a("s_nop 0")
    rbf(t1)
    a(f"v_rcp_f32 v{t1}, v{t1}")
    a("s_nop 0")
    a(f"v_mul_f32 v{rs_v}, v{r_v}, v{t1}")
    a(f"v_mul_f32 v{mb}, v{mb}, v{r_v}")
    a(f"v_sub_f32 v{mb}, 0, v{mb}")
    a(f"v_mul_f32 v{mean}, v{mean}, v{rs_v}")
    a(f"v_sub_f32 v{mean}, 0, v{mean}")
    a(f"v_and_b32 v{t0}, 31, v0")
    a(f"v_cmp_eq_u32 vcc, 1, v{t0}")
    a("s_nop 1")
    a(f"v_cndmask_b32 v{r_v}, v{r_v}, v{mb}, vcc")
    a(f"v_cmp_eq_u32 vcc, 2, v{t0}")
    a("s_nop 1")
    a(f"v_cndmask_b32 v{r_v}, v{r_v}, v{rs_v}, vcc")
    a(f"v_cmp_eq_u32 vcc, 3, v{t0}")
    a("s_nop 1")
    a(f"v_cndmask_b32 v{r_v}, v{r_v}, v{mean}, vcc")
    a(f"v_lshlrev_b32 v{t1}, 13, v{t0}")
    a(f"v_lshl_add_u32 v{t1}, v{g_}, 2, v{t1}")
    a(f"v_add_u32 v{t1}, {RS_OFF}, v{t1}")
    a(f"v_mov_b32 v{t2}, 0x7fffff00")
    a(f"v_cmp_gt_u32 vcc, 4, v{t0}")
    a("s_nop 1")
    a(f"v_cndmask_b32 v{t1}, v{t2}, v{t1}, vcc")
    a(f"buffer_store_dword v{r_v}, v{t1}, s[{SW}:{SW+3}], 0 offen sc1")
    a(f"s_branch {name}_ld_rsret")

ACC = 96
vAA = 2
vBA = 6
vSA = 8
vBF = 12
vAF = 32

TOP = None
def gen_compute(a, name, stflag):
    global TOP
    TOP = name
    t0, t1, t2, t3 = 48, 49, 50, 51
    W = sWAVE
    a(f"v_and_b32 v{t0}, 31, v0")
    a(f"v_lshrrev_b32 v{t1}, 5, v0")
    a(f"v_bfe_u32 v{t2}, v0, 1, 3")
    a(f"v_xor_b32 v{t2}, v{t2}, v{t1}")
    a(f"v_lshlrev_b32 v{t2}, 4, v{t2}")
    a(f"v_lshl_add_u32 v{t2}, v{t0}, 7, v{t2}")
    a(f"s_mul_i32 s{sT0}, s{W}, 24576")
    for st in range(4):
        a(f"v_xor_b32 v{vAA+st}, {st*32}, v{t2}")
        a(f"v_add_u32 v{vAA+st}, s{sT0}, v{vAA+st}")
    a(f"v_bfe_u32 v{t0}, v0, 4, 1")
    a(f"v_and_b32 v{t2}, 3, v0")
    a(f"v_lshlrev_b32 v{t0}, 5, v{t0}")
    a(f"v_lshl_add_u32 v{t0}, v{t2}, 3, v{t0}")
    a(f"v_bfe_u32 v{t2}, v0, 2, 2")
    a(f"v_lshl_add_u32 v{t1}, v{t1}, 3, v{t2}")
    a(f"v_bfe_u32 v{t3}, v0, 3, 1")
    a(f"v_lshlrev_b32 v{t3}, 6, v{t3}")
    a(f"v_xor_b32 v{t3}, v{t3}, v{t0}")
    a(f"v_lshl_add_u32 v{t3}, v{t1}, 7, v{t3}")
    a(f"v_add_u32 v{vBA}, {LDS_B}, v{t3}")
    a(f"v_xor_b32 v{vBA+1}, 64, v{vBA}")
    a(f"v_lshl_add_u32 v{t3}, v{t1}, 6, v{t0}")
    a(f"v_add_u32 v{vSA}, {LDS_B}, v{t3}")
    a(f"s_getpc_b64 s[72:73]")
    a.label(f"{name}_pc")
    a(f"s_sub_u32 s72, s72, {name}_pc-code_begin")
    a(f"s_subb_u32 s73, s73, 0")
    a(f"s_lshr_b32 s{sT0}, s2, 3")
    a(f"s_and_b32 s{sT0}, s{sT0}, 7")
    a(f"s_lshl_b32 s{sT0}, s{sT0}, 2")
    a(f"s_add_u32 s{sT0}, s{sT0}, s{W}")
    a(f"s_lshl_b32 s{sT0}, s{sT0}, 11")
    a(f"v_and_b32 v{t0}, 31, v0")
    a(f"v_lshlrev_b32 v{t0}, 6, v{t0}")
    a(f"v_add_u32 v{t0}, s{sT0}, v{t0}")
    a(f"v_min_u32 v11, code_end-code_begin-4, v{t0}")
    a(f"global_load_dword v{t1}, v11, s[72:73]")
    for r in range(ACC, 256):
        a(f"v_mov_b32 v{r}, 0")
    a(f"s_cmp_eq_u32 s{sTYPE}, 1")
    a(f"s_cbranch_scc1 {name}_cq")
    a(f"s_cmp_eq_u32 s{sTYPE}, 2")
    a(f"s_cbranch_scc1 {name}_ckv")
    H9 = [("H", "m0", 0, [0, 1]), ("H", "m1", 0, [0, 1]), ("H", "m0", 8192, [0, 1]), ("H", "m1", 8192, [0, 1]), ("H", "s", 16384, [0])]
    Q5 = [("Q", "m0", 0, [0, 1]), ("Q", "m1", 0, [0, 1]), ("Q", "m0", 8192, [0, 1]), ("Q", "m1", 8192, [0, 1]), ("Q", "s", 16384, [0, 1])]
    QKV = [("Q", "m0", 0, [0, 1]), ("Q", "m1", 0, [0, 1]), ("V", "s", 8192, [0, 1]), None, ("K", "s", 16384, [0, 1])]
    gen_variant(a, name + "_h", H9, stflag)
    a.label(f"{name}_cq")
    gen_variant(a, name + "_q", Q5, stflag)
    a.label(f"{name}_ckv")
    gen_variant(a, name + "_kv", QKV, stflag)

def pf(a, ptr, base, nbytes, dst, va=48):
    G = 128 if 'g128' in EXP else 64
    a(f"s_mul_i32 s{sT0}, s{sWI}, {nbytes}")
    if base: a(f"s_add_u32 s{sT0}, s{sT0}, {base}")
    n = 0
    for o in range(0, nbytes, 64 * G):
        a(f"v_lshlrev_b32 v{va}, {7 if G == 128 else 6}, v0")
        if o: a(f"v_add_u32 v{va}, {o}, v{va}")
        a(f"v_min_u32 v{va}, {nbytes - 64}, v{va}")
        a(f"v_add_u32 v{va}, s{sT0}, v{va}")
        a(f"global_load_dword v{dst}, v{va}, s[{ptr}:{ptr+1}]")
        n += 1
    return n

def acc(nb, ps):
    return ACC + (nb * 2 + ps) * 16

def gen_variant(a, name, spec, stflag):
    blocks = [nb for nb in range(5) if spec[nb] is not None]
    mf = [(nb, ps) for nb in blocks for ps in spec[nb][3]]

    def rdB(nb, slot, st):
        kind, fmt, off, _ = spec[nb]
        o = []
        for j in range(2):
            if fmt == "s":
                o.append((f"ds_read_b64_tr_b16 v[{vBF+4*nb+2*j}:{vBF+4*nb+2*j+1}], v{vSA} offset:{slot*SLOT_B + off + st*1024 + j*256}", ("B", nb, j)))
            else:
                o.append((f"ds_read_b64_tr_b16 v[{vBF+4*nb+2*j}:{vBF+4*nb+2*j+1}], v{vBA + int(fmt[1])} offset:{slot*SLOT_B + off + st*2048 + j*512}", ("B", nb, j)))
        return o
    def rdA(slot, st):
        buf = st % 2
        return [(f"ds_read_b128 v[{vAF+buf*8+ps*4}:{vAF+buf*8+ps*4+3}], v{vAA+st} offset:{slot*8192 + ps*4096}", ("A", buf, ps)) for ps in range(2)]

    def tile(out, q, slot, last, extra=None):
        for st in range(4):
            nslot, nst = (slot, st + 1) if st < 3 else ((slot + 1) % 3, 0)
            nxt = not (last and st == 3)
            pend = []
            if nxt:
                pend += rdA(nslot, nst)
            hold = BAR_AT if st == 3 else 0
            for mi, (nb, ps) in enumerate(mf):
                tags = []
                for (nb2, ps2) in mf[mi:mi + 2]:
                    tags += [("B", nb2, 0), ("B", nb2, 1), ("A", st % 2, ps2)]
                own = [("B", nb, 0), ("B", nb, 1), ("A", st % 2, ps)]
                probe = Q("p", 15); probe.issued = list(q.issued); probe.done = q.done
                if probe.need(own) is not None:
                    n = q.need(tags)
                    out.append(f"s_waitcnt lgkmcnt({n})")
                A_ = v(vAF + (st % 2) * 8 + ps * 4, 4)
                B_ = v(vBF + 4 * nb, 4)
                c = v(acc(nb, ps), 16)
                if spec[nb][0] == "V":
                    out.append(f"v_mfma_f32_32x32x16_bf16 {c}, {A_}, {B_}, {c}")
                else:
                    out.append(f"v_mfma_f32_32x32x16_bf16 {c}, {B_}, {A_}, {c}")
                if nxt and (mi + 1 == len(mf) or mf[mi + 1][0] != nb):
                    pend += rdB(nb, nslot, nst)
                if st == 3 and nxt and mi + 1 == hold:
                    out.append("s_waitcnt lgkmcnt(0)")
                    q.drain()
                    out.append("s_barrier")
                if mi + 1 >= hold:
                    k = 0
                    while pend and k < 3:
                        ins, tag = pend.pop(0)
                        out.append(ins); q.issue(tag); k += 1
                if extra and (st, mi) in extra:
                    out += extra[(st, mi)]
            assert not pend, pend

    BAR_AT = 3
    a("s_barrier")
    ST.mark(a, 1)
    q = Q("lgkm", 15)
    for ins, tag in rdA(0, 0) + sum((rdB(nb, 0, 0) for nb in blocks), []):
        a(ins)
    a("s_waitcnt lgkmcnt(0)")
    dummy = []
    tile(dummy, q, 2, False)
    body = []
    for slot in range(3):
        tile(body, q, slot, False)
    a(f"s_mov_b32 s{sPH}, 5")
    a(".p2align 6")
    a.label(f"{name}_loop")
    for ln in body: a(ln)
    a(f"s_sub_u32 s{sPH}, s{sPH}, 1")
    a(f"s_cmp_lg_u32 s{sPH}, 0")
    a(f"s_cbranch_scc1 {name}_loop")
    if not FUSED: ST.mark(a, 2)
    isH = spec[0][0] == "H"
    hasV = any(sp and sp[0] == "V" for sp in spec)
    vR = 52
    vO = 60
    vRow = 62
    pre = []
    pre.append(f"s_lshl_b32 s{sT0}, s{sMT}, 8")
    pre.append(f"s_lshl_b32 s{sT1}, s{sWAVE}, 6")
    pre.append(f"s_add_u32 s{sT0}, s{sT0}, s{sT1}")
    pre.append(f"s_lshl_b32 s{sT0}, s{sT0}, 2")
    pre.append(f"s_add_u32 s{sT0}, s{sT0}, {RS_OFF + (16384 if isH else 0)}")
    pre.append(f"s_add_u32 s{sT1}, s{sT0}, 8192")
    pre.append(f"s_lshl_b32 s{sT2}, s{sFLIP}, 7")
    pre.append(f"v_and_b32 v{vRow}, 31, v0")
    pre.append(f"v_lshlrev_b32 v{vRow}, 2, v{vRow}")
    pre.append(f"v_add_u32 v{vRow}, s{sT2}, v{vRow}")
    pre.append(f"v_xor_b32 v{vRow+1}, 0x80, v{vRow}")
    pre2 = []
    for ps in range(2):
        pre2.append(f"buffer_load_dword v{vR+4*ps}, v{vRow+ps}, s[{SW}:{SW+3}], s{sT0} offen sc1")
        pre2.append(f"buffer_load_dword v{vR+4*ps+2}, v{vRow+ps}, s[{SW}:{SW+3}], s{sT1} offen sc1")
    extra = {(0, 0): pre[:4], (0, 1): pre[4:8], (0, 2): pre[8:], (0, 3): pre2[:1], (0, 5): pre2[1:2], (1, 1): pre2[2:3], (1, 3): pre2[3:], (1, 5): ["global_load_dword v10, v11, s[72:73]"]}
    vVS = acc(3, 0)
    if hasV:
        vs = [f"v_lshrrev_b32 v9, 5, v0", f"v_lshlrev_b32 v9, 4, v9"]
        for ps in range(2):
            dst = vVS if ps == 0 else 64
            for g in range(4):
                vs.append(f"buffer_load_dwordx4 v[{dst+4*g}:{dst+4*g+3}], v9, s[{SW}:{SW+3}], s{sT0} offen offset:{ps*128 + g*32} sc1")
                vs.append(f"buffer_load_dwordx4 v[{dst+16+4*g}:{dst+16+4*g+3}], v9, s[{SW}:{SW+3}], s{sT1} offen offset:{ps*128 + g*32} sc1")
        extra[(1, 6)] = vs[:2]
        k = 2
        for st_ in (2, 3):
            for mi in range(8):
                extra[(st_, mi)] = vs[k:k + 1]; k += 1
    last = []
    tile(last, q, 0, True, extra)
    for ln in last: a(ln)

    ST.mark(a, 2 if FUSED else 3)
    a(f"s_and_b32 s{sT0}, s{sWAVE}, 1")
    a(f"s_lshl_b32 s{sT0}, s{sT0}, 1")
    a(f"s_add_u32 s{sT0}, s{sT0}, s{sFLIP}")
    a(f"s_lshl_b32 s{sT0}, s{sT0}, 10")
    a(f"v_lshlrev_b32 v{vO}, 4, v0")
    a(f"v_add_u32 v{vO}, s{sT0}, v{vO}")
    a(f"v_xor_b32 v{vO+1}, 0x400, v{vO}")
    a(f"s_lshr_b32 s{sT0}, s{sWAVE}, 1")
    a(f"s_lshl_b32 s{sT1}, s{sMT}, 1")
    a(f"s_add_u32 s{sT0}, s{sT0}, s{sT1}")
    if isH:
        a(f"s_mul_i32 s{sT3}, s{sT0}, {A2_MT}")
        a(f"s_add_u32 s{sT3}, s{sT3}, {A2_OFF + 64*4096}")
    else:
        a(f"s_mul_i32 s{sT3}, s{sT0}, {QF_MT}")
        a(f"s_add_u32 s{sT3}, s{sT3}, {QF_OFF}")
    a(f"s_lshl_b32 s{sT1}, s{sCBM}, 13")
    a(f"s_add_u32 s{sOA}, s{sT3}, s{sT1}")
    a(f"s_lshl_b32 s{sT1}, s{sCBS}, 13")
    a(f"s_add_u32 s{sOB}, s{sT3}, s{sT1}")
    vT = 63
    a(f"v_lshrrev_b32 v{vT}, 5, v0")
    a(f"v_lshlrev_b32 v{vT}, 4, v{vT}")
    a(f"v_add_u32 v{vT}, {LDS_M}, v{vT}")
    vCS = [12, 64]
    vBI = [28, 80]
    vK0, vK1 = 44, 46
    vTMP = 2
    def rdtab(nb, buf):
        for g in range(4):
            a(f"ds_read_b128 v[{vCS[buf]+4*g}:{vCS[buf]+4*g+3}], v{vT} offset:{nb*128 + g*32}")
        if isH:
            for g in range(4):
                a(f"ds_read_b128 v[{vBI[buf]+4*g}:{vBI[buf]+4*g+3}], v{vT} offset:{1024 + nb*128 + g*32}")
    nrd = 8 if isH else 4
    order = [nb for nb in blocks if spec[nb][0] != "V"]
    if hasV: order = [4, 0, 1]
    a("s_barrier")
    rdtab(order[0], 0)
    a(f"v_mov_b32 v{vK0}, {f32(G_C0)}")
    a(f"v_mov_b32 v{vK1}, {f32(G_C1)}")
    a(f"s_waitcnt vmcnt({17 if hasV else 1})")
    if not isH:
        for ps in range(2):
            a(f"v_mul_f32 v{vR+4*ps+1}, {f32(QSCALE)}, v{vR+4*ps}")
            a(f"v_mul_f32 v{vR+4*ps+3}, {f32(QSCALE)}, v{vR+4*ps+2}")
    def P(r): return v(r, 2)
    a("s_nop 7")
    if hasV:
        nb = 2
        a(f"v_and_b32 v2, 31, v0")
        a(f"v_lshlrev_b32 v2, 2, v2")
        a(f"v_add_u32 v2, {LDS_M + 256}, v2")
        a(f"ds_read_b32 v4, v2")
        a("s_waitcnt vmcnt(0) lgkmcnt(0)")
        for ps in range(2):
            src = vVS if ps == 0 else 64
            c = acc(nb, ps)
            for e in range(0, 16, 2):
                a(f"v_pk_mul_f32 {P(c+e)}, {P(c+e)}, {P(src+e)}")
            for e in range(0, 16, 2):
                a(f"v_pk_fma_f32 {P(c+e)}, {P(src+16+e)}, {P(4)}, {P(c+e)} op_sel:[0,0,0] op_sel_hi:[1,0,1]")
            for half in range(2):
                for i in range(4):
                    e = half * 8 + 2 * i
                    a(f"v_cvt_pk_bf16_f32 v{c+half*8+i}, v{c+e}, v{c+e+1}")
                emit_store(a, spec, nb, ps, half, c + half * 8, vO, stflag)
    deferred = []
    for bi, nb in enumerate(order):
        buf = bi % 2
        if bi + 1 < len(order) and nb != 4:
            rdtab(order[bi + 1], 1 - buf)
            a(f"s_waitcnt lgkmcnt({nrd})")
        else:
            a("s_waitcnt lgkmcnt(0)")
        kind = spec[nb][0]
        if nb == 4:
            ob = 1 - buf
            for p in range(1, 4):
                for g in range(4):
                    a(f"ds_read_b128 v[{vCS[ob]+4*g}:{vCS[ob]+4*g+3}], v{vT} offset:{(4+p)*128 + g*32}")
                a("s_waitcnt lgkmcnt(0)")
                for e in range(0, 16, 2):
                    a(f"v_pk_add_f32 {P(vCS[buf]+e)}, {P(vCS[buf]+e)}, {P(vCS[ob]+e)}")
            if bi + 1 < len(order):
                rdtab(order[bi + 1], 1 - buf)
        if isH and nb == 4:
            a(f"s_cmp_eq_u32 s{sCW}, 31")
            a(f"s_cbranch_scc1 {name}_end")
        for ps in spec[nb][3]:
            c = acc(nb, ps)
            sel = 1 if kind == "Q" else 0
            sc_ = f"op_sel:[0,{sel},0] op_sel_hi:[1,{sel},1]"
            if kind == "H":
                for half in range(2):
                    T = [2, 4, 6, 8]
                    idx = [half * 8 + 2 * i for i in range(4)]
                    for i, e in enumerate(idx):
                        a(f"v_pk_fma_f32 {P(T[i])}, {P(vCS[buf]+e)}, {P(vR+4*ps+2)}, {P(vBI[buf]+e)} {sc_}")
                    for i, e in enumerate(idx):
                        a(f"v_pk_fma_f32 {P(c+e)}, {P(c+e)}, {P(vR+4*ps)}, {P(T[i])} {sc_}")
                    for i, e in enumerate(idx):
                        a(f"v_pk_mul_f32 {P(T[i])}, {P(c+e)}, {P(c+e)}")
                    for i, e in enumerate(idx):
                        a(f"v_pk_fma_f32 {P(T[i])}, {P(T[i])}, {P(vK1)}, {P(vK0)} op_sel:[0,0,0] op_sel_hi:[1,0,0]")
                    for i, e in enumerate(idx):
                        a(f"v_pk_mul_f32 {P(T[i])}, {P(T[i])}, {P(c+e)}")
                    for i in range(8):
                        a(f"v_exp_f32 v{2+i}, v{2+i}")
                    for i, e in enumerate(idx):
                        a(f"v_pk_add_f32 {P(T[i])}, {P(T[i])}, 1.0 op_sel_hi:[1,0]")
                    for i in range(8):
                        a(f"v_rcp_f32 v{2+i}, v{2+i}")
                    for i, e in enumerate(idx):
                        a(f"v_pk_mul_f32 {P(c+e)}, {P(c+e)}, {P(T[i])}")
                    for i, e in enumerate(idx):
                        a(f"v_cvt_pk_bf16_f32 v{c+half*8+i}, v{c+e}, v{c+e+1}")
                    if nb == 4 or 'nodefer' in EXP:
                        emit_store(a, spec, nb, ps, half, c + half * 8, vO, stflag)
                    else:
                        deferred.append((nb, ps, half, c + half * 8))
            else:
                for e in range(0, 16, 2):
                    a(f"v_pk_mul_f32 {P(c+e)}, {P(c+e)}, {P(vR+4*ps)} op_sel:[0,{sel}] op_sel_hi:[1,{sel}]")
                for e in range(0, 16, 2):
                    a(f"v_pk_fma_f32 {P(c+e)}, {P(vCS[buf]+e)}, {P(vR+4*ps+2)}, {P(c+e)} {sc_}")
                for half in range(2):
                    for i in range(4):
                        e = half * 8 + 2 * i
                        a(f"v_cvt_pk_bf16_f32 v{c+half*8+i}, v{c+e}, v{c+e+1}")
                    emit_store(a, spec, nb, ps, half, c + half * 8, vO, stflag)
    a.label(f"{name}_end")
    for (nb, ps, half, reg) in deferred:
        emit_store(a, spec, nb, ps, half, reg, vO, stflag)
    if FUSED:
        a(f"s_lshr_b32 s{sT0}, s{sWAVE}, 1")
        a(f"s_lshl_b32 s{sT1}, s{sMT}, 1")
        a(f"s_add_u32 s{sT0}, s{sT0}, s{sT1}")
        if isH:
            a(f"s_lshl_b32 s{sT0}, s{sT0}, 2")
            a(f"s_and_b32 s{sT1}, s{sCW}, 3")
            a(f"s_add_u32 s{sT0}, s{sT0}, s{sT1}")
            a(f"s_mul_i32 s{sT3}, s{sT0}, {FLS}")
            a(f"s_add_u32 s{sT3}, s{sT3}, {FL_OFF + FL_H*FLS}")
            a("v_mov_b32 v2, 1")
            a("v_lshlrev_b32 v3, 24, v0")
        else:
            if hasV:
                a(f"s_mov_b32 s{sT3}, {FL_OFF + FL_A*FLS}")
                a("v_mov_b32 v4, 0x10000")
                a(f"v_mul_u32_u24 v3, {FLS}, v0")
                a("v_lshrrev_b32 v5, 4, v0")
                a("v_lshl_add_u32 v5, v5, 24, v3")
                a("s_waitcnt vmcnt(8)")
                a(f"buffer_atomic_add v4, v5, s[{SW}:{SW+3}], s{sT3} offen sc1")
            a(f"s_mul_i32 s{sT3}, s{sT0}, {FLS}")
            a(f"s_add_u32 s{sT3}, s{sT3}, {FL_OFF + FL_A*FLS}")
            a("v_mov_b32 v2, 1")
            a("v_lshlrev_b32 v3, 24, v0")
        if ST.on: ST.mark(a, 3)
        a(f"s_waitcnt vmcnt({1 if hasV else 0})")
        a(f"buffer_atomic_add v2, v3, s[{SW}:{SW+3}], s{sT3} offen sc1")
        a(f"s_branch {TOP}_g2")
    else:
        ST.mark(a, 4)
        ST.flush(a, 5, SW, sWAVE, ST_OFF)
        a("s_endpgm")

def emit_store(a, spec, nb, ps, half, reg, vO, stflag):
    kind = spec[nb][0]
    if kind in ("H", "Q"):
        base = sOB if nb == 4 else sOA
        off = (0 if nb == 4 else nb * 8192) + half * 4096
        a(f"s_add_u32 s{sT0}, s{base}, {off}")
        a(f"buffer_store_dwordx4 v[{reg}:{reg+3}], v{vO+ps}, s[{SW}:{SW+3}], s{sT0} offen {stflag}")
    else:
        a(f"s_lshl_b32 s{sT0}, s{sMT}, 3")
        a(f"s_lshl_b32 s{sT1}, s{sWAVE}, 1")
        a(f"s_add_u32 s{sT0}, s{sT0}, s{sT1}")
        a(f"s_lshl_b32 s{sT0}, s{sT0}, 12")
        a(f"s_add_u32 s{sT0}, s{sT0}, {KV_OFF + ps*4096 + (2048 if kind == 'V' else 0) + half*1024}")
        a(f"v_lshlrev_b32 v8, 4, v0")
        a(f"buffer_store_dwordx4 v[{reg}:{reg+3}], v8, s[{SW}:{SW+3}], s{sT0} offen {stflag}")
```

```python
import math, os
EXP = os.environ.get('EXP', '')
from asmlib import *
from layout import *

LDS_KV = 0
LDS_GB = 65536
LDS_PROG = 163840 - 64
RED_STRIDE = 272
RED_PART = 128 * RED_STRIDE

SX, SWO, SW2, SW, SB2, SD, SO, SWC = 24, 28, 32, 36, 40, 44, 48, 52
sWAVE, sMT, sNT, sAMT, sAH = 56, 57, 58, 59, 60
sT0, sT1, sT2, sT3 = 61, 62, 63, 64
sIT, sCH, sTGT, sKVO, sM0, sPASS, sQO, sOO, sSPIN = 65, 66, 67, 68, 69, 70, 71, 72, 73
sAO, sBO, sLI = 66, 67, 68
ST = Stamps(False)

def srd(a, base, ptr, size):
    a(f"s_mov_b32 s{base}, s{ptr}")
    a(f"s_mov_b32 s{base+1}, s{ptr+1}")
    a(f"s_mov_b32 s{base+2}, {size}")
    a(f"s_mov_b32 s{base+3}, 0x20000")

def gen_k3(name, do_att=True, do_gemm=True, NQ=1, stamps=False, kidx=1, ostflag="sc1"):
    global ST
    ST = Stamps(stamps, 76, kidx)
    fused = do_att and do_gemm
    a = Asm()
    a(f".globl {name}\n.p2align 8\n.type {name},@function")
    a.label(name)
    a("s_cmp_ge_u32 s2, 256")
    a(f"s_cbranch_scc1 {name}_exit")
    ST.mark(a, 0)
    a("s_load_dwordx2 s[8:9], s[0:1], 0")
    a("s_load_dwordx2 s[10:11], s[0:1], 32")
    a("s_load_dwordx8 s[12:19], s[0:1], 64")
    a("s_load_dwordx2 s[20:21], s[0:1], 96")
    a("v_lshrrev_b32 v1, 6, v0")
    a("v_and_b32 v0, 63, v0")
    a(f"v_readfirstlane_b32 s{sWAVE}, v1")
    a(f"s_and_b32 s{sT0}, s2, 7")
    a(f"s_lshr_b32 s{sT1}, s2, 3")
    a(f"s_and_b32 s{sMT}, s{sT0}, 3")
    a(f"s_lshl_b32 s{sMT}, s{sMT}, 2")
    a(f"s_and_b32 s{sT2}, s{sT1}, 3")
    a(f"s_add_u32 s{sMT}, s{sMT}, s{sT2}")
    a(f"s_lshr_b32 s{sNT}, s{sT0}, 2")
    a(f"s_lshl_b32 s{sNT}, s{sNT}, 3")
    a(f"s_lshr_b32 s{sT2}, s{sT1}, 2")
    a(f"s_add_u32 s{sNT}, s{sNT}, s{sT2}")
    a(f"s_lshr_b32 s{sAMT}, s2, 4")
    a(f"s_and_b32 s{sAH}, s2, 15")
    a(f"v_mov_b32 v2, {LDS_PROG}")
    a("v_mov_b32 v4, 0\nv_mov_b32 v5, 0\nv_mov_b32 v6, 0\nv_mov_b32 v7, 0")
    a("ds_write_b128 v2, v[4:7]")
    a("s_waitcnt lgkmcnt(0)")
    srd(a, SX, 8, 4194304)
    srd(a, SWO, 10, 2097152)
    srd(a, SW2, 12, 7340032)
    srd(a, SB2, 14, 2048)
    srd(a, SO, 16, 4194304)
    srd(a, SD, 18, 256)
    srd(a, SW, 20, WS_USED)
    srd(a, SWC, 12, 7340032)
    a(f"s_cmp_ge_u32 s{sWAVE}, 4")
    a(f"s_cbranch_scc1 {name}_gemm")
    if do_att:
        gen_att(a, name, NQ, fused, ostflag)
    else:
        a("s_barrier")
    if do_gemm:
        a(f"s_branch {name}_final")
    else:
        ST.flush(a, 4, SW, sWAVE, ST_OFF)
        a("s_endpgm")
    a.label(f"{name}_gemm")
    if do_gemm:
        gen_gemm(a, name, NQ, fused)
        a.label(f"{name}_final")
        gen_final(a, name)
    else:
        a("s_barrier")
    a.label(f"{name}_exit")
    a("s_endpgm")
    return a.text()

def gen_att(a, name, NQ, fused, ostflag):
    vL16 = 1
    vPA, vPR, vPV, vPG = 2, 3, 4, 5
    vIDX = 6
    vT0, vT1 = 8, 9
    K0, K1, V0, V1 = 12, 16, 20, 24
    SEL = 28
    P = 32
    S = [48, 64]
    Qf = [80 + 8 * i for i in range(NQ)]
    LA = [96 + 4 * i for i in range(NQ)]
    C = [112 + 16 * i for i in range(NQ)]
    O = [144 + 16 * i for i in range(NQ)]
    QN = 176
    NP = 2 // NQ
    NCH = 16 * NP
    MF = "v_mfma_f32_32x32x16_bf16"
    a(f"v_lshlrev_b32 v{vL16}, 4, v0")
    a(f"s_mul_i32 s{sQO}, s{sAMT}, {QF_MT}")
    a(f"s_lshl_b32 s{sT0}, s{sAH}, {13 if NQ == 1 else 14}")
    a(f"s_lshl_b32 s{sT1}, s{sWAVE}, 10")
    a(f"s_add_u32 s{sT0}, s{sT0}, s{sT1}")
    a(f"s_add_u32 s{sQO}, s{sQO}, s{sT0}")
    a(f"s_add_u32 s{sQO}, s{sQO}, {QF_OFF}")
    a(f"s_mul_i32 s{sOO}, s{sAMT}, {A2_MT}")
    a(f"s_add_u32 s{sOO}, s{sOO}, s{sT0}")
    if A2_OFF: a(f"s_add_u32 s{sOO}, s{sOO}, {A2_OFF}")
    a(f"s_lshr_b32 s{sKVO}, s2, 3")
    a(f"s_and_b32 s{sKVO}, s{sKVO}, 15")
    a(f"s_lshl_b32 s{sM0}, s{sWAVE}, 12")
    a(f"s_mov_b32 s{sCH}, 0")
    def dma(slot):
        o = []
        o.append(f"s_lshl_b32 s{sT0}, s{sKVO}, 14")
        o.append(f"s_add_u32 s{sT0}, s{sT0}, s{sM0}")
        o.append(f"s_add_u32 s{sT0}, s{sT0}, {KV_OFF}")
        o.append(f"s_cmp_lt_u32 s{sCH}, {NCH}")
        o.append(f"s_cselect_b32 s{sT0}, s{sT0}, 0x7f000000")
        o.append(f"s_add_u32 m0, s{sM0}, {LDS_KV + slot*16384}")
        o.append(f"s_add_u32 s{sKVO}, s{sKVO}, 1")
        for i in range(4):
            o.append(f"buffer_load_dwordx4 v{vL16}, s[{SW}:{SW+3}], s{sT0} offen offset:{i*1024} lds")
        o.append(f"s_and_b32 s{sKVO}, s{sKVO}, 15")
        o.append(f"s_add_u32 s{sCH}, s{sCH}, 1")
        return o
    for ln in dma(0): a(ln)
    for qi in range(NQ):
        for f in range(2):
            a(f"s_add_u32 s{sT1}, s{sQO}, {qi*8192 + f*4096}")
            a(f"buffer_load_dwordx4 {v(Qf[qi]+4*f,4)}, v{vL16}, s[{SW}:{SW+3}], s{sT1} offen")
    for sl in (1, 2):
        for ln in dma(sl): a(ln)
    if NP == 2:
        for f in range(2):
            a(f"s_add_u32 s{sT1}, s{sQO}, {16*8192 + f*4096}")
            a(f"buffer_load_dwordx4 {v(QN+4*f,4)}, v{vL16}, s[{SW}:{SW+3}], s{sT1} offen")
    a(f"s_lshl_b32 s{sT0}, s{sWAVE}, 2")
    a(f"s_add_u32 s{sT0}, s{sT0}, {LDS_PROG}")
    a(f"v_mov_b32 v{vPA}, s{sT0}")
    a(f"v_and_b32 v{vPR}, 3, v0")
    a(f"v_lshlrev_b32 v{vPR}, 2, v{vPR}")
    a(f"v_add_u32 v{vPR}, {LDS_PROG}, v{vPR}")
    a(f"v_mov_b32 v{vT0}, 0x3f803f80")
    a(f"v_and_b32 v{vT1}, 4, v0")
    a(f"v_cmp_eq_u32 vcc, 0, v{vT1}")
    a("s_nop 1")
    a(f"v_cndmask_b32 v{SEL}, 0, v{vT0}, vcc")
    a(f"v_cndmask_b32 v{SEL+1}, 0, v{vT0}, vcc")
    a(f"v_cndmask_b32 v{SEL+2}, v{vT0}, 0, vcc")
    a(f"v_cndmask_b32 v{SEL+3}, v{vT0}, 0, vcc")
    a(f"v_mov_b32 v{vT0}, 0x4444")
    a(f"v_mov_b32 v{vIDX}, 0xeeee")
    a(f"v_and_b32 v{vT1}, 1, v0")
    a(f"v_cmp_eq_u32 vcc, 0, v{vT1}")
    a("s_nop 1")
    a(f"v_cndmask_b32 v{vIDX}, v{vIDX}, v{vT0}, vcc")
    for r in range(V1, V1 + 4): a(f"v_mov_b32 v{r}, 0")
    a(f"s_mov_b32 s{sPASS}, 0")
    a(f"s_mov_b32 s{sTGT}, 1")
    a(f"v_mov_b32 v{vPV}, 1")
    a(f"s_waitcnt vmcnt({8 + (2 if NP == 2 else 0)})")
    a("s_barrier")
    ST.mark(a, 1)

    a.label(f"{name}_pass")
    def rd(reg, tile, fr):
        return f"ds_read_b128 {v(reg,4)}, v{vL16} offset:{LDS_KV + (tile % 16)*4096 + fr*1024}"
    a(rd(P, 0, 0)); a(rd(P + 4, 0, 1))
    kt = 1 if NQ == 1 else 0
    a(rd(K0, kt, 0)); a(rd(K1, kt, 1)); a(rd(V0, 0, 2))
    for qi in range(NQ):
        for r in range(16): a(f"v_mov_b32 v{O[qi]+r}, 0")
        for r in range(4): a(f"v_mov_b32 v{LA[qi]+r}, 0")
    a("s_waitcnt lgkmcnt(0)")
    for qi in range(NQ):
        a(f"{MF} {v(S[qi],16)}, {v(P,4)}, {v(Qf[qi],4)}, 0")
        a(f"{MF} {v(S[qi],16)}, {v(P+4,4)}, {v(Qf[qi]+4,4)}, {v(S[qi],16)}")
    a("s_nop 15")
    def rowmax(src, dst):
        a(f"v_max3_f32 v{dst}, v{src}, v{src+1}, v{src+2}")
        for i in range(3, 15, 2):
            a(f"v_max3_f32 v{dst}, v{dst}, v{src+i}, v{src+i+1}")
        a(f"v_max_f32 v{dst}, v{dst}, v{src+15}")
    def xhalf_max(r, t):
        a(f"v_mov_b32 v{t}, v{r}")
        a("s_nop 1")
        a(f"v_permlane32_swap_b32 v{r}, v{t}")
        a("s_nop 1")
        a(f"v_max_f32 v{r}, v{r}, v{t}")
    for qi in range(NQ):
        rowmax(S[qi], vT0)
        xhalf_max(vT0, vT1)
        for r in range(16): a(f"v_sub_f32 v{C[qi]+r}, 0, v{vT0}")
    for r in range(16): a(f"v_add_f32 v{S[0]+r}, v{S[0]+r}, v{C[0]}")
    for r in range(8): a(f"v_mov_b32 v{P+r}, 0")
    a(f"s_mov_b32 s{sIT}, 4")

    slow = []
    def unit(out, q, u):
        U = 16 * NQ
        tl = lambda x: x // NQ
        qq = lambda x: x % NQ
        cur, nxt = S[u % 2], S[(u + 1) % 2]
        def wait(tags):
            n = q.need(tags)
            if n is not None: out.append(f"s_waitcnt lgkmcnt({n})")
        def exp(i): out.append(f"v_exp_f32 v{cur+i}, v{cur+i}")
        def cvt(i): out.append(f"v_cvt_pk_bf16_f32 v{P+i}, v{cur+2*i}, v{cur+2*i+1}")
        def reload(reg, tile, fr, tag):
            out.append(rd(reg, tile, fr)); q.issue(tag)
        upc = 4 * NQ
        ph = u % upc
        chk_at = upc - 2 if NQ == 1 else upc - 2
        c = u // upc
        if ph == chk_at:
            wait(["PG"])
            lb = f"{name}_slow{c}"
            out.append(f"v_cmp_gt_u32 vcc, s{sTGT}, v{vPG}")
            exp(0)
            if 'nochk' not in EXP: out.append(f"s_cbranch_vccnz {lb}")
            out.append(f"{lb}_ret:")
            if lb not in [x[0] for x in slow]: slow.append((lb,))
        else:
            exp(0)
        exp(1)
        wait(["V1"])
        out.append(f"{MF} {v(O[qq(u-1)],16)}, {v(V1,4)}, {v(P+4,4)}, {v(O[qq(u-1)],16)}")
        if qq(u - 1) == NQ - 1: reload(V1, tl(u - 1) + 1, 3, "V1")
        exp(2); exp(3)
        if ph == 0:
            out.append(f"s_add_u32 s{sTGT}, s{sTGT}, 1")
            out.append(f"v_add_u32 v{vPV}, 1, v{vPV}")
            out.append("s_waitcnt vmcnt(4)")
            out.append(f"ds_write_b32 v{vPA}, v{vPV}"); q.issue("PW")
            if fused and NP == 2 and c == 1:
                out.append(f"s_cmp_eq_u32 s{sTGT}, 19")
                out.append(f"s_cbranch_scc1 {name}_sig0")
                out.append(f"{name}_sig0_ret:")
        dm = dma((c + 3) % 4) if (ph == chk_at and 'nodma' not in EXP) else []
        out += dm[:7]
        out.append(f"v_smfmac_f32_16x16x64_bf16 {v(LA[qq(u-1)],4)}, {v(SEL,4)}, {v(P,8)}, v{vIDX}")
        exp(4); out += dm[7:8]; cvt(0); exp(5)
        wait(["K0", "K1"] if NQ == 2 else ["K0"])
        out.append(f"{MF} {v(nxt,16)}, {v(K0,4)}, {v(Qf[qq(u+1)],4)}, {v(C[qq(u+1)],16)}")
        if qq(u + 1) == NQ - 1: reload(K0, tl(u + 1) + 1, 0, "K0")
        cvt(1); exp(6); out += dm[8:9]; exp(7); exp(8); cvt(2)
        wait(["K1"])
        out.append(f"{MF} {v(nxt,16)}, {v(K1,4)}, {v(Qf[qq(u+1)]+4,4)}, {v(nxt,16)}")
        if qq(u + 1) == NQ - 1: reload(K1, tl(u + 1) + 1, 1, "K1")
        exp(9); cvt(3); exp(10); out += dm[9:10]; exp(11); cvt(4); exp(12)
        wait(["V0"])
        out.append(f"{MF} {v(O[qq(u)],16)}, {v(V0,4)}, {v(P,4)}, {v(O[qq(u)],16)}")
        if qq(u) == NQ - 1: reload(V0, tl(u) + 1, 2, "V0")
        if ph == chk_at - 1:
            out.append(f"ds_read_b32 v{vPG}, v{vPR}"); q.issue("PG")
        cvt(5); exp(13); out += dm[10:]; exp(14); exp(15); cvt(6); cvt(7)
    q = Q("lgkm", 15)
    dummy = []
    for u in range(16 * NQ): unit(dummy, q, u)
    body = []
    for u in range(16 * NQ): unit(body, q, u)
    a(".p2align 6")
    a.label(f"{name}_aloop")
    for ln in body: a(ln)
    a(f"s_sub_u32 s{sIT}, s{sIT}, 1")
    a(f"s_cmp_lg_u32 s{sIT}, 0")
    a(f"s_cbranch_scc1 {name}_aloop")
    ql = NQ - 1
    a("s_waitcnt lgkmcnt(0)")
    a(f"{MF} {v(O[ql],16)}, {v(V1,4)}, {v(P+4,4)}, {v(O[ql],16)}")
    a(f"v_smfmac_f32_16x16x64_bf16 {v(LA[ql],4)}, {v(SEL,4)}, {v(P,8)}, v{vIDX}")
    a("s_nop 15")
    for qi in range(NQ):
        a(f"v_add_f32 v{LA[qi]}, v{LA[qi]}, v{LA[qi]+1}")
        a(f"v_mov_b32 v{vT0}, {f32(2.0**40)}")
        a(f"v_cmp_nle_f32 vcc, v{LA[qi]}, v{vT0}")
        a("s_nop 1")
        a(f"s_cbranch_vccz {name}_ok{qi}")
        gen_fallback(a, name, qi, Qf[qi], C[qi], O[qi], LA[qi], S, P, SEL, vIDX, vL16, vT0, vT1, rowmax, xhalf_max)
        a.label(f"{name}_ok{qi}")
        a(f"v_rcp_f32 v{vT0}, v{LA[qi]}")
        a("s_nop 0")
        for r in range(16): a(f"v_mul_f32 v{O[qi]+r}, v{O[qi]+r}, v{vT0}")
        for i in range(8): a(f"v_cvt_pk_bf16_f32 v{S[1]+8*qi+i}, v{O[qi]+2*i}, v{O[qi]+2*i+1}")
        for f in range(2):
            a(f"s_add_u32 s{sT1}, s{sOO}, {qi*8192 + f*4096}")
            a(f"buffer_store_dwordx4 {v(S[1]+8*qi+4*f,4)}, v{vL16}, s[{SW}:{SW+3}], s{sT1} offen {ostflag}")
    def signal(passno):
        o = []
        o.append(f"s_lshl_b32 s{sT0}, s{sAMT}, 8")
        o.append(f"s_add_u32 s{sT0}, s{sT0}, {FL_OFF + passno*4096}")
        o.append(f"v_mov_b32 v{vT0}, 1")
        o.append(f"v_lshlrev_b32 v{vT1}, 24, v0")
        o.append(f"buffer_atomic_add v{vT0}, v{vT1}, s[{SW}:{SW+3}], s{sT0} offen sc1")
        return o
    if NP == 2:
        a(f"s_add_u32 s{sPASS}, s{sPASS}, 1")
        a(f"s_add_u32 s{sOO}, s{sOO}, {16*8192}")
        a("s_nop 1")
        for r in range(8): a(f"v_mov_b32 v{Qf[0]+r}, v{QN+r}")
        a(f"s_cmp_lt_u32 s{sPASS}, 2")
        a(f"s_cbranch_scc1 {name}_pass")
    if fused:
        a("s_waitcnt vmcnt(0)")
        for ln in signal(NP - 1): a(ln)
    ST.mark(a, 2)
    ST.mark(a, 3)
    a(f"s_branch {name}_attdone")
    if fused and NP == 2:
        a.label(f"{name}_sig0")
        for ln in signal(0): a(ln)
        a(f"s_branch {name}_sig0_ret")
    for (lb,) in slow:
        a.label(lb)
        a(f"s_mov_b32 s{sSPIN}, 0")
        a.label(lb + "_l")
        a(f"ds_read_b32 v{vPG}, v{vPR}")
        a(f"s_add_u32 s{sSPIN}, s{sSPIN}, 1")
        a(f"s_cmp_gt_u32 s{sSPIN}, 0x400000")
        a(f"s_cbranch_scc1 {lb}_ret")
        a("s_waitcnt lgkmcnt(0)")
        a(f"v_cmp_gt_u32 vcc, s{sTGT}, v{vPG}")
        a("s_nop 1")
        a(f"s_cbranch_vccnz {lb}_l")
        a(f"s_branch {lb}_ret")
    a.label(f"{name}_attdone")

def gen_fallback(a, name, qi, Qr, C, O, LA, S, P, SEL, vIDX, vL16, vT0, vT1, rowmax, xhalf_max):
    MF = "v_mfma_f32_32x32x16_bf16"
    F = 192
    vM = 10
    S0 = 208
    a(f"v_mov_b32 v{vM}, 0xff800000")
    a(f"s_mov_b32 s{sT2}, {KV_OFF}")
    a.label(f"{name}_fb1_{qi}")
    for f in range(2):
        a(f"buffer_load_dwordx4 {v(F+4*f,4)}, v{vL16}, s[{SW}:{SW+3}], s{sT2} offen offset:{f*1024}")
    a("s_waitcnt vmcnt(0)")
    a(f"{MF} {v(S0,16)}, {v(F,4)}, {v(Qr,4)}, 0")
    a(f"{MF} {v(S0,16)}, {v(F+4,4)}, {v(Qr+4,4)}, {v(S0,16)}")
    a("s_nop 15")
    rowmax(S0, vT0)
    a(f"v_max_f32 v{vM}, v{vM}, v{vT0}")
    a(f"s_add_u32 s{sT2}, s{sT2}, 4096")
    a(f"s_cmp_lt_u32 s{sT2}, {KV_OFF + KV_SIZE}")
    a(f"s_cbranch_scc1 {name}_fb1_{qi}")
    xhalf_max(vM, vT1)
    for r in range(16): a(f"v_sub_f32 v{C+r}, 0, v{vM}")
    for r in range(16): a(f"v_mov_b32 v{O+r}, 0")
    for r in range(4): a(f"v_mov_b32 v{LA+r}, 0")
    a(f"s_mov_b32 s{sT2}, {KV_OFF}")
    a.label(f"{name}_fb2_{qi}")
    for f in range(4):
        a(f"buffer_load_dwordx4 {v(F+4*f,4)}, v{vL16}, s[{SW}:{SW+3}], s{sT2} offen offset:{f*1024}")
    a("s_waitcnt vmcnt(0)")
    a(f"{MF} {v(S0,16)}, {v(F,4)}, {v(Qr,4)}, {v(C,16)}")
    a(f"{MF} {v(S0,16)}, {v(F+4,4)}, {v(Qr+4,4)}, {v(S0,16)}")
    a("s_nop 15")
    for r in range(16): a(f"v_exp_f32 v{S0+r}, v{S0+r}")
    a("s_nop 0")
    for i in range(8): a(f"v_cvt_pk_bf16_f32 v{P+i}, v{S0+2*i}, v{S0+2*i+1}")
    a("s_nop 1")
    a(f"{MF} {v(O,16)}, {v(F+8,4)}, {v(P,4)}, {v(O,16)}")
    a(f"{MF} {v(O,16)}, {v(F+12,4)}, {v(P+4,4)}, {v(O,16)}")
    a(f"v_smfmac_f32_16x16x64_bf16 {v(LA,4)}, {v(SEL,4)}, {v(P,8)}, v{vIDX}")
    a("s_nop 7")
    a(f"s_add_u32 s{sT2}, s{sT2}, 4096")
    a(f"s_cmp_lt_u32 s{sT2}, {KV_OFF + KV_SIZE}")
    a(f"s_cbranch_scc1 {name}_fb2_{qi}")
    a("s_nop 15")
    a(f"v_add_f32 v{LA}, v{LA}, v{LA+1}")

GACC = 128
def gacc(nb, rb): return GACC + (rb * 2 + nb) * 16

def gen_gemm(a, name, NQ, fused):
    MF = "v_mfma_f32_32x32x16_bf16"
    vL16, vB0, vB1, vR0, vR1 = 1, 2, 3, 4, 5
    t0, t1, t2, t3 = 6, 7, 8, 9
    BF = [16, 24]
    AF = [32 + 16 * i for i in range(4)]
    GW = sT3
    a(f"s_sub_u32 s{GW}, s{sWAVE}, 4")
    a(f"v_lshlrev_b32 v{vL16}, 4, v0")
    a(f"v_lshrrev_b32 v{t0}, 3, v0")
    a(f"v_lshlrev_b32 v{t0}, 11, v{t0}")
    a(f"v_and_b32 v{t1}, 7, v0")
    a(f"v_bfe_u32 v{t2}, v0, 4, 1")
    a(f"v_lshlrev_b32 v{t2}, 2, v{t2}")
    a(f"v_xor_b32 v{t1}, v{t1}, v{t2}")
    a(f"v_lshl_add_u32 v{t0}, v{t1}, 4, v{t0}")
    a(f"s_lshl_b32 s{sT0}, s{sNT}, 7")
    a(f"s_lshl_b32 s{sT1}, s{GW}, 15")
    a(f"s_add_u32 s{sT0}, s{sT0}, s{sT1}")
    a(f"v_add_u32 v{vB0}, s{sT0}, v{t0}")
    a(f"v_add_u32 v{vB1}, {16384 - 1024}, v{vB0}")
    a(f"s_lshl_b32 s{sM0}, s{GW}, 13")
    a(f"s_add_u32 s{sM0}, s{sM0}, {LDS_GB}")
    a(f"s_mul_i32 s{sQO}, s{sMT}, {A2_MT}")
    a(f"s_lshl_b32 s{sT0}, s{GW}, 12")
    a(f"s_add_u32 s{sQO}, s{sQO}, s{sT0}")
    if A2_OFF: a(f"s_add_u32 s{sQO}, s{sQO}, {A2_OFF}")

    if not fused:
        order = list(range(18))
    elif NQ == 2:
        order = list(range(4, 18)) + [0, 1, 2, 3]
    else:
        order = list(range(4, 18)) + [0, 1, 2, 3]
    assert order == [(i + order[0]) % 18 for i in range(18)]
    def setup_li():
        o = []
        o.append(f"s_lshl_b32 s{sAO}, s{sLI}, 16")
        o.append(f"s_add_u32 s{sAO}, s{sAO}, s{sQO}")
        o.append(f"s_cmp_lt_u32 s{sLI}, 4")
        o.append(f"s_cselect_b32 s{SWC}, s{SWO}, s{SW2}")
        o.append(f"s_cselect_b32 s{SWC+1}, s{SWO+1}, s{SW2+1}")
        o.append(f"s_cselect_b32 s{SWC+2}, s{SWO+2}, s{SW2+2}")
        o.append(f"s_cselect_b32 s{sT0}, 0, 4")
        o.append(f"s_sub_u32 s{sBO}, s{sLI}, s{sT0}")
        o.append(f"s_lshl_b32 s{sBO}, s{sBO}, 19")
        o.append(f"s_add_u32 s{sLI}, s{sLI}, 1")
        o.append(f"s_cmp_eq_u32 s{sLI}, 18")
        o.append(f"s_cselect_b32 s{sLI}, 0, s{sLI}")
        return o
    aflag = "sc1" if fused else ""
    def ldB(i):
        return [f"s_add_u32 m0, s{sM0}, {i*2048}",
                f"s_add_u32 s{sT1}, s{sBO}, {i*131072}",
                f"buffer_load_dwordx4 v{vB0}, s[{SWC}:{SWC+3}], s{sT1} offen lds",
                f"buffer_load_dwordx4 v{vB1}, s[{SWC}:{SWC+3}], s{sT1} offen offset:1024 lds",
                f"s_add_u32 s{sT2}, s{sAO}, {i*16384}"]
    def ldA(i, rb):
        return f"buffer_load_dwordx4 {v(AF[i]+4*rb,4)}, v{vL16}, s[{SW}:{SW+3}], s{sT2} offen offset:{rb*1024} {aflag}"
    if 'pfk2' not in EXP:
        a(f"s_lshl_b32 s{sT0}, s2, 2")
        a(f"s_add_u32 s{sT0}, s{sT0}, s{GW}")
        a(f"s_mul_i32 s{sT1}, s{sT0}, 7168")
        a(f"s_lshl_b32 s{sT2}, s{sT0}, 11")
        a(f"v_lshlrev_b32 v{t0}, 6, v0")
        a(f"v_min_u32 v{t1}, 3008, v{t0}")
        a(f"v_min_u32 v{t2}, 1984, v{t0}")
        a(f"buffer_load_dword v10, v{t0}, s[{SW2}:{SW2+3}], s{sT1} offen")
        a(f"s_add_u32 s{sT1}, s{sT1}, 4096")
        a(f"buffer_load_dword v10, v{t1}, s[{SW2}:{SW2+3}], s{sT1} offen")
        a(f"buffer_load_dword v10, v{t2}, s[{SWO}:{SWO+3}], s{sT2} offen")
    a(f"s_mov_b32 s{sLI}, {order[0]}")
    for ln in setup_li(): a(ln)
    for i in range(4):
        for ln in ldB(i): a(ln)
        for rb in range(4): a(ldA(i, rb))
    a(f"v_bfe_u32 v{t0}, v0, 4, 1")
    a(f"v_and_b32 v{t2}, 3, v0")
    a(f"v_lshlrev_b32 v{t0}, 5, v{t0}")
    a(f"v_lshl_add_u32 v{t0}, v{t2}, 3, v{t0}")
    a(f"v_bfe_u32 v{t2}, v0, 2, 2")
    a(f"v_lshrrev_b32 v{t1}, 5, v0")
    a(f"v_lshl_add_u32 v{t1}, v{t1}, 2, v{t2}")
    a(f"v_bfe_u32 v{t3}, v0, 3, 1")
    a(f"v_lshlrev_b32 v{t3}, 6, v{t3}")
    a(f"v_xor_b32 v{t3}, v{t3}, v{t0}")
    a(f"v_lshl_add_u32 v{t3}, v{t1}, 7, v{t3}")
    a(f"v_add_u32 v{vR0}, s{sM0}, v{t3}")
    a(f"v_xor_b32 v{vR1}, 64, v{vR0}")
    for r in range(GACC, 256): a(f"v_mov_b32 v{r}, 0")
    a("s_barrier")
    def rdB(i):
        b = BF[i % 2]
        return [f"ds_read_b64_tr_b16 {v(b+4*nb+2*j,2)}, v{vR0+nb} offset:{(i%4)*2048 + j*1024}" for nb in range(2) for j in range(2)]
    a("s_waitcnt vmcnt(22)")
    ST.mark(a, 1)
    for ln in rdB(0): a(ln)

    def step(i, load, last_iter):
        if load: a("s_waitcnt vmcnt(16) lgkmcnt(0)")
        else:
            rem = {0: 16, 1: 10, 2: 4, 3: 0}[i]
            a(f"s_waitcnt vmcnt({rem}) lgkmcnt(0)")
        rds = rdB(i + 1) if not (last_iter and i == 3) else []
        lb = ldB(i) if load else []
        k = 0
        for rb in range(4):
            for nb in range(2):
                c = v(gacc(nb, rb), 16)
                a(f"{MF} {c}, {v(BF[i%2]+4*nb,4)}, {v(AF[i]+4*rb,4)}, {c}")
                if k == 0:
                    for ln in rds: a(ln)
                    for ln in lb: a(ln)
                if nb == 1 and load: a(ldA(i, rb))
                k += 1
    a(f"s_mov_b32 s{sIT}, 17")
    a(".p2align 6")
    a.label(f"{name}_gloop")
    if fused:
        first = [0, 2] if NQ == 1 else [0]
        a(f"s_cmp_lt_u32 s{sLI}, 3")
        a(f"s_cbranch_scc1 {name}_gchk")
        a(f"s_cmp_eq_u32 s{sLI}, 17")
        a(f"s_cbranch_scc1 {name}_gchk")
        a.label(f"{name}_gnow")
    for ln in setup_li(): a(ln)
    for i in range(4): step(i, True, False)
    a(f"s_sub_u32 s{sIT}, s{sIT}, 1")
    a(f"s_cmp_lg_u32 s{sIT}, 0")
    a(f"s_cbranch_scc1 {name}_gloop")
    for i in range(4): step(i, False, True)
    ST.mark(a, 3)
    if fused:
        a(f"s_branch {name}_final")
        a.label(f"{name}_gchk")
        a(f"s_add_u32 s{sT0}, s{sLI}, 1")
        a(f"s_cmp_ge_u32 s{sT0}, 18")
        a(f"s_cselect_b32 s{sT0}, 0, s{sT0}")
        a(f"s_lshr_b32 s{sT0}, s{sT0}, 1")
        if NQ == 2: a(f"s_mov_b32 s{sT0}, 0")
        a(f"s_lshl_b32 s{sT0}, s{sT0}, 4")
        a(f"s_add_u32 s{sT0}, s{sT0}, s{sMT}")
        a(f"s_lshl_b32 s{sT0}, s{sT0}, 8")
        a(f"s_add_u32 s{sT0}, s{sT0}, {FL_OFF}")
        a(f"v_lshlrev_b32 v{t0}, 24, v0")
        a(f"s_bitcmp1_b32 s{sLI}, 0")
        a(f"s_cbranch_scc0 {name}_gchk2")
        a(f"buffer_load_dword v{t1}, v{t0}, s[{SW}:{SW+3}], s{sT0} offen sc1")
        a(f"s_branch {name}_gnow")
        a.label(f"{name}_gchk2")
        if ST.on:
            a(f"s_cmp_eq_u32 s{sLI}, 0")
            a(f"s_cbranch_scc0 {name}_gchk3")
            ST.mark(a, 2)
            a.label(f"{name}_gchk3")
        a(f"s_mov_b32 s{sSPIN}, 0")
        a.label(f"{name}_gpoll")
        a(f"v_readfirstlane_b32 s{sT1}, v{t1}")
        a(f"s_cmp_ge_u32 s{sT1}, 64")
        a(f"s_cbranch_scc1 {name}_gnow")
        a("s_sleep 8")
        a(f"buffer_load_dword v{t1}, v{t0}, s[{SW}:{SW+3}], s{sT0} offen sc1")
        a(f"s_add_u32 s{sSPIN}, s{sSPIN}, 1")
        a(f"s_cmp_gt_u32 s{sSPIN}, 0x40000")
        a(f"s_cbranch_scc1 {name}_gnow")
        a("s_waitcnt vmcnt(0)")
        a(f"s_branch {name}_gpoll")

def gen_final(a, name):
    vX, vB2, vOA, vRA = 96, 104, 108, 110
    a(f"v_lshrrev_b32 v2, 3, v0")
    a(f"v_and_b32 v3, 7, v0")
    a(f"s_lshl_b32 s{sT0}, s{sMT}, 7")
    a(f"s_lshl_b32 s{sT1}, s{sWAVE}, 4")
    a(f"s_add_u32 s{sT0}, s{sT0}, s{sT1}")
    a(f"s_lshl_b32 s{sT0}, s{sT0}, 11")
    a(f"s_lshl_b32 s{sT2}, s{sNT}, 7")
    a(f"s_add_u32 s{sT0}, s{sT0}, s{sT2}")
    a(f"s_add_u32 s{sT1}, s{sT0}, 16384")
    a(f"v_lshlrev_b32 v4, 4, v3")
    a(f"v_lshl_add_u32 v{vOA}, v2, 11, v4")
    a(f"buffer_load_dwordx4 {v(vX,4)}, v{vOA}, s[{SX}:{SX+3}], s{sT0} offen")
    a(f"buffer_load_dwordx4 {v(vX+4,4)}, v{vOA}, s[{SX}:{SX+3}], s{sT1} offen")
    a(f"buffer_load_dwordx4 {v(vB2,4)}, v4, s[{SB2}:{SB2+3}], s{sT2} offen")
    a(f"v_mul_u32_u24 v{vRA}, {RED_STRIDE}, v2")
    a(f"v_lshl_add_u32 v{vRA}, v3, 5, v{vRA}")
    a(f"s_mul_i32 s{sT3}, s{sWAVE}, {16*RED_STRIDE}")
    a(f"v_add_u32 v{vRA}, s{sT3}, v{vRA}")
    a(f"v_add_u32 v{vRA+1}, {2*RED_PART}, v{vRA}")
    a("s_waitcnt vmcnt(3) lgkmcnt(0)")
    a("s_barrier")
    a(f"s_cmp_lt_u32 s{sWAVE}, 4")
    a(f"s_cbranch_scc1 {name}_fin2")
    a(f"v_and_b32 v2, 31, v0")
    a(f"v_mul_u32_u24 v2, {RED_STRIDE}, v2")
    a(f"v_lshrrev_b32 v3, 5, v0")
    a(f"v_lshl_add_u32 v2, v3, 4, v2")
    a(f"s_sub_u32 s{sT3}, s{sWAVE}, 4")
    a(f"s_mul_i32 s{sT3}, s{sT3}, {RED_PART}")
    a(f"v_add_u32 v2, s{sT3}, v2")
    for rb in range(4):
        for nb in range(2):
            for g in range(4):
                a(f"ds_write_b128 v2, {v(gacc(nb,rb)+4*g,4)} offset:{rb*32*RED_STRIDE + nb*128 + g*32}")
    a("s_waitcnt lgkmcnt(0)")
    a.label(f"{name}_fin2")
    a("s_barrier")
    D = 16
    for rg in range(2):
        for p in range(4):
            for hh in range(2):
                a(f"ds_read_b128 {v(D + rg*32 + p*8 + hh*4, 4)}, v{vRA + p//2} offset:{(p%2)*RED_PART + rg*8*RED_STRIDE + hh*16}")
    a("s_waitcnt vmcnt(0)")
    for i in range(4):
        a(f"v_lshlrev_b32 v{80+2*i}, 16, v{vB2+i}")
        a(f"v_and_b32 v{80+2*i+1}, 0xffff0000, v{vB2+i}")
    for rg in range(2):
        for i in range(4):
            a(f"v_lshlrev_b32 v{88+2*i}, 16, v{vX+4*rg+i}")
            a(f"v_and_b32 v{88+2*i+1}, 0xffff0000, v{vX+4*rg+i}")
        for i in range(0, 8, 2):
            a(f"v_pk_add_f32 {v(88+i,2)}, {v(88+i,2)}, {v(80+i,2)}")
        a(f"s_waitcnt lgkmcnt({8 if rg == 0 else 0})")
        b = D + rg * 32
        for i in range(0, 8, 2):
            a(f"v_pk_add_f32 {v(b+i,2)}, {v(b+i,2)}, {v(b+8+i,2)}")
            a(f"v_pk_add_f32 {v(b+16+i,2)}, {v(b+16+i,2)}, {v(b+24+i,2)}")
        for i in range(0, 8, 2):
            a(f"v_pk_add_f32 {v(b+i,2)}, {v(b+i,2)}, {v(b+16+i,2)}")
        for i in range(0, 8, 2):
            a(f"v_pk_add_f32 {v(b+i,2)}, {v(b+i,2)}, {v(88+i,2)}")
        for i in range(4):
            a(f"v_cvt_pk_bf16_f32 v{b+8+i}, v{b+2*i}, v{b+2*i+1}")
        a(f"buffer_store_dwordx4 {v(b+8,4)}, v{vOA}, s[{SO}:{SO+3}], s{sT0 if rg == 0 else sT1} offen")
    ST.flush(a, 4, SW, sWAVE, ST_OFF)
```

```python
import math, os
from asmlib import *
from layout import *
import k2
EXP = os.environ.get('EXP', '')

LDS_KV = 0
LDS_GB = 65536
LDS_PROG = k2.LDS_M + 2048
RED_STRIDE = 272
RED_PART = 128 * RED_STRIDE
D = 6

SX, SW, sWAVE = k2.SX, k2.SW, k2.sWAVE
SWC, SKV, SB2, SO = 28, 32, 40, 44
sMT, sNT, sAMT, sAH = 48, 49, 50, 51
sT0, sT1, sT2, sT3 = 57, 58, 59, 60
sIT, sKVO, sM0, sQO, sOO, sSPIN, sHS, sAW = 63, 64, 65, 66, 67, 68, 69, 70
MF = "v_mfma_f32_32x32x16_bf16"

def srd(a, base, ptr, size):
    a(f"s_mov_b32 s{base}, s{ptr}")
    a(f"s_mov_b32 s{base+1}, s{ptr+1}")
    a(f"s_mov_b32 s{base+2}, {size}")
    a(f"s_mov_b32 s{base+3}, 0x20000")

def common(a):
    a(f"s_and_b32 s{sT0}, s2, 7")
    a(f"s_lshr_b32 s{sT1}, s2, 3")
    a(f"s_and_b32 s{sMT}, s{sT0}, 3")
    a(f"s_lshl_b32 s{sMT}, s{sMT}, 2")
    a(f"s_and_b32 s{sT2}, s{sT1}, 3")
    a(f"s_add_u32 s{sMT}, s{sMT}, s{sT2}")
    a(f"s_lshr_b32 s{sNT}, s{sT0}, 2")
    a(f"s_lshl_b32 s{sNT}, s{sNT}, 3")
    a(f"s_lshr_b32 s{sT2}, s{sT1}, 2")
    a(f"s_add_u32 s{sNT}, s{sNT}, s{sT2}")
    srd(a, SB2, 96, 2048)
    srd(a, SO, 98, 4194304)

def phase2(a, name, ST):
    a.label(f"{name}_att")
    gen_att(a, name, ST)
    a(f"s_branch {name}_final")
    a.label(f"{name}_g2")
    gen_gemm(a, name, ST)
    a.label(f"{name}_final")
    gen_final(a, name, ST)

def gen_att(a, name, ST):
    NQ = 2
    vL16 = 1
    vPA, vPR, vPV, vPG = 2, 3, 4, 5
    vIDX = 6
    vT0, vT1 = 8, 9
    SEL = 12
    F = [16, 32]
    P = 48
    S = [64, 80]
    Qf = [96, 104]
    LA = [112, 116]
    C = [128, 144]
    O = [160, 176]
    ST.mark(a, 2)
    common(a)
    a(f"s_sub_u32 s{sAW}, s{sWAVE}, 4")
    a(f"s_lshr_b32 s{sAMT}, s2, 4")
    a(f"s_and_b32 s{sAH}, s2, 15")
    a(f"s_add_u32 s{SKV}, s22, {KV_OFF}")
    a(f"s_addc_u32 s{SKV+1}, s23, 0")
    a(f"s_mov_b32 s{SKV+2}, {KV_SIZE}")
    a(f"s_mov_b32 s{SKV+3}, 0x20000")
    a(f"v_lshlrev_b32 v{vL16}, 4, v0")
    a(f"s_mul_i32 s{sQO}, s{sAMT}, {QF_MT}")
    a(f"s_lshl_b32 s{sT0}, s{sAH}, 14")
    a(f"s_lshl_b32 s{sT1}, s{sAW}, 10")
    a(f"s_add_u32 s{sT0}, s{sT0}, s{sT1}")
    a(f"s_add_u32 s{sQO}, s{sQO}, s{sT0}")
    a(f"s_add_u32 s{sQO}, s{sQO}, {QF_OFF}")
    a(f"s_mul_i32 s{sOO}, s{sAMT}, {A2_MT}")
    a(f"s_add_u32 s{sOO}, s{sOO}, s{sT0}")
    a(f"s_lshl_b32 s{sM0}, s{sAW}, 12")
    a(f"s_lshr_b32 s{sKVO}, s2, 3")
    a(f"s_and_b32 s{sKVO}, s{sKVO}, 15")
    a(f"s_lshl_b32 s{sKVO}, s{sKVO}, 14")
    a(f"s_add_u32 s{sKVO}, s{sKVO}, s{sM0}")
    def dma(slot):
        o = [f"s_add_u32 m0, s{sM0}, {LDS_KV + slot*16384}"]
        for i in range(4):
            o.append(f"buffer_load_dwordx4 v{vL16}, s[{SKV}:{SKV+3}], s{sKVO} offen offset:{i*1024} lds")
        o.append(f"s_add_u32 s{sKVO}, s{sKVO}, 16384")
        o.append(f"s_and_b32 s{sKVO}, s{sKVO}, {KV_SIZE-1}")
        return o
    a(f"s_lshl_b32 s{sT0}, s{sAW}, 7")
    a(f"s_add_u32 s{sT0}, s{sT0}, {LDS_PROG}")
    a(f"v_mov_b32 v{vPA}, s{sT0}")
    a(f"v_and_b32 v{vPR}, 3, v0")
    a(f"v_lshlrev_b32 v{vPR}, 7, v{vPR}")
    a(f"v_add_u32 v{vPR}, {LDS_PROG}, v{vPR}")
    a(f"v_mov_b32 v{vT0}, 0x3f803f80")
    a(f"v_and_b32 v{vT1}, 4, v0")
    a(f"v_cmp_eq_u32 vcc, 0, v{vT1}")
    a("s_nop 1")
    a(f"v_cndmask_b32 v{SEL}, 0, v{vT0}, vcc")
    a(f"v_cndmask_b32 v{SEL+1}, 0, v{vT0}, vcc")
    a(f"v_cndmask_b32 v{SEL+2}, v{vT0}, 0, vcc")
    a(f"v_cndmask_b32 v{SEL+3}, v{vT0}, 0, vcc")
    a(f"v_mov_b32 v{vT0}, 0x4444")
    a(f"v_mov_b32 v{vIDX}, 0xeeee")
    a(f"v_and_b32 v{vT1}, 1, v0")
    a(f"v_cmp_eq_u32 vcc, 0, v{vT1}")
    a("s_nop 1")
    a(f"v_cndmask_b32 v{vIDX}, v{vIDX}, v{vT0}, vcc")
    for r in range(4): a(f"v_mov_b32 v{F[1]+12+r}, 0")
    for r in range(8): a(f"v_mov_b32 v{P+r}, 0")
    for qi in range(NQ):
        for r in range(16): a(f"v_mov_b32 v{O[qi]+r}, 0")
        for r in range(4): a(f"v_mov_b32 v{LA[qi]+r}, 0")
    a("s_setprio 2")
    a(f"s_mul_i32 s{sT3}, s{sAMT}, {FLS}")
    a(f"s_add_u32 s{sT3}, s{sT3}, {FL_OFF + FL_A*FLS}")
    a(f"v_lshlrev_b32 v{vT1}, 24, v0")
    vGO = 10
    a(f"v_mov_b32 v{vGO}, {LDS_PROG + 4}")
    def poll(lbl, test):
        a(f"s_mov_b32 s{sSPIN}, 0")
        a.label(lbl)
        a(f"s_add_u32 s{sSPIN}, s{sSPIN}, 1")
        a(f"s_cmp_gt_u32 s{sSPIN}, 0x100000")
        a(f"s_cbranch_scc1 {lbl}_ok")
        a(f"s_cmp_eq_u32 s{sAW}, 0")
        a(f"s_cbranch_scc0 {lbl}_f")
        a(f"buffer_load_dword v{vT0}, v{vT1}, s[{SW}:{SW+3}], s{sT3} offen sc1")
        a("s_waitcnt vmcnt(0)")
        a(f"v_readfirstlane_b32 s{sT0}, v{vT0}")
        a("s_nop 1")
        a(f"v_mov_b32 v{vT0}, s{sT0}")
        a(f"ds_write_b32 v{vGO}, v{vT0}")
        for ln in test: a(ln)
        a(f"s_cbranch_scc1 {lbl}_ok")
        a(f"s_sleep {os.environ.get('SLA', '8')}")
        a(f"s_branch {lbl}")
        a.label(f"{lbl}_f")
        a(f"ds_read_b32 v{vT0}, v{vGO}")
        a("s_waitcnt lgkmcnt(0)")
        a(f"v_readfirstlane_b32 s{sT0}, v{vT0}")
        for ln in test: a(ln)
        a(f"s_cbranch_scc1 {lbl}_ok")
        a("s_sleep 3")
        a(f"s_branch {lbl}")
        a.label(f"{lbl}_ok")
    poll(f"{name}_pkv", [f"s_cmp_ge_u32 s{sT0}, {32 << 16}"])
    ST.mark(a, 3)
    for sl in range(3):
        dm = dma(sl)
        a(dm[0]); a("s_nop 0")
        for ln in dm[1:]: a(ln)
    a(f"s_and_b32 s{sT0}, s{sT0}, 0xffff")
    a(f"s_cmp_ge_u32 s{sT0}, 14")
    a(f"s_cbranch_scc1 {name}_pq_ok")
    poll(f"{name}_pq", [f"s_and_b32 s{sT0}, s{sT0}, 0xffff", f"s_cmp_ge_u32 s{sT0}, 14"])
    for qi in range(NQ):
        for f in range(2):
            a(f"s_add_u32 s{sT1}, s{sQO}, {qi*8192 + f*4096}")
            a(f"buffer_load_dwordx4 {v(Qf[qi]+4*f,4)}, v{vL16}, s[{SW}:{SW+3}], s{sT1} offen sc1")
    a("s_waitcnt vmcnt(8)")
    a(f"v_mov_b32 v{vPV}, 1")
    a(f"ds_write_b32 v{vPA}, v{vPV}")
    def spin(lb, ret):
        a(f"s_mov_b32 s{sSPIN}, 0")
        a.label(lb + "_l")
        a(f"ds_read_b32 v{vPG}, v{vPR}")
        a(f"s_add_u32 s{sSPIN}, s{sSPIN}, 1")
        a(f"s_cmp_gt_u32 s{sSPIN}, 0x400000")
        a(f"s_cbranch_scc1 {ret}")
        a("s_waitcnt lgkmcnt(0)")
        a(f"v_cmp_gt_u32 vcc, v{vPV}, v{vPG}")
        a("s_nop 1")
        a(f"s_cbranch_vccnz {lb}_l")
    spin(f"{name}_a0", f"{name}_a0_ret")
    a.label(f"{name}_a0_ret")
    def rd(tile, fr):
        return f"ds_read_b128 {v(F[tile%2]+4*fr,4)}, v{vL16} offset:{LDS_KV + (tile % 16)*4096 + fr*1024}"
    for t, fr in ((0, 0), (0, 1), (0, 2), (0, 3), (1, 0), (1, 1), (1, 2)): a(rd(t, fr))
    a("s_waitcnt vmcnt(0) lgkmcnt(0)")
    ST.mark(a, 4)
    for qi in range(NQ):
        a(f"{MF} {v(S[qi],16)}, {v(F[0],4)}, {v(Qf[qi],4)}, 0")
        a(f"{MF} {v(S[qi],16)}, {v(F[0]+4,4)}, {v(Qf[qi]+4,4)}, {v(S[qi],16)}")
    a("s_nop 15")
    def rowmax(src, dst):
        a(f"v_max3_f32 v{dst}, v{src}, v{src+1}, v{src+2}")
        for i in range(3, 15, 2):
            a(f"v_max3_f32 v{dst}, v{dst}, v{src+i}, v{src+i+1}")
        a(f"v_max_f32 v{dst}, v{dst}, v{src+15}")
    def xhalf_max(r, t):
        a(f"v_mov_b32 v{t}, v{r}")
        a("s_nop 1")
        a(f"v_permlane32_swap_b32 v{r}, v{t}")
        a("s_nop 1")
        a(f"v_max_f32 v{r}, v{r}, v{t}")
    for qi in range(NQ):
        rowmax(S[qi], vT0)
        xhalf_max(vT0, vT1)
        for r in range(16): a(f"v_sub_f32 v{C[qi]+r}, 0, v{vT0}")
    for r in range(16): a(f"v_add_f32 v{S[0]+r}, v{S[0]+r}, v{C[0]}")
    a(f"s_mov_b32 s{sIT}, 4")

    SCHED = os.environ.get("SCHED", "e0 e1 D e2 e3 e4 S e5 c0 c1 A e6 e7 e8 c2 B e9 c3 e10 e11 c4 C e12 e13 e14 e15 c5 c6 c7").split()
    slow = []
    def unit(out, q, u):
        t, qi = u // 2, u % 2
        tp, qp = (u - 1) // 2, (u - 1) % 2
        tn, qn = (u + 1) // 2, (u + 1) % 2
        cur, nxt = S[u % 2], S[(u + 1) % 2]
        ph, c = u % 8, u // 8
        post = {k: [] for k in "DSABC"}
        pre = {k: [] for k in "DSABC"}
        def lds(slot, ins, tag): post[slot].append((ins, tag))
        if qi == 0:
            lds("D", rd(t + 1, 3), ("V1", (t + 1) % 2))
            lds("A", rd(t + 2, 0), ("K0", t % 2))
            lds("B", rd(t + 2, 1), ("K1", t % 2))
        else:
            lds("C", rd(t + 2, 2), ("V0", t % 2))
        if ph == 2: lds("S", f"ds_read_b32 v{vPG}, v{vPR}", "PG")
        if ph == 7: lds("D", f"ds_write_b32 v{vPA}, v{vPV}", "PW")
        if ph == 6: pre["C"].append(f"v_add_u32 v{vPV}, 1, v{vPV}")
        dm = dma((c + 3) % 4)
        if ph == 3:
            post["S"].append((dm[1], None)); post["A"].append((dm[2], None)); post["B"].append((dm[3], None))
        if ph == 4:
            post["S"].append((dm[4], None)); post["C"].append((dm[5], None)); post["C"].append((dm[6], None))
        for tok in SCHED:
            if tok[0] == "e":
                i = int(tok[1:]); out.append(f"v_exp_f32 v{cur+i}, v{cur+i}")
            elif tok[0] == "c":
                i = int(tok[1:]); out.append(f"v_cvt_pk_bf16_f32 v{P+i}, v{cur+2*i}, v{cur+2*i+1}")
            else:
                out += pre[tok]
                if tok == "D":
                    if qi == 1:
                        tags = [("V1", t % 2), ("K0", (t + 1) % 2), ("K1", (t + 1) % 2), ("V0", (t + 1) % 2)] + (["PG"] if ph == 3 else [])
                        n = q.need(tags)
                        w = f"lgkmcnt({n})" if n is not None else ""
                        if ph == 7: w = "vmcnt(4) " + w
                        if w: out.append(f"s_waitcnt {w}")
                    out.append(f"{MF} {v(O[qp],16)}, {v(F[tp%2]+12,4)}, {v(P+4,4)}, {v(O[qp],16)}")
                    if ph == 3:
                        lb = f"{name}_slow{c}"
                        out.append(dm[0])
                        out.append(f"v_cmp_gt_u32 vcc, v{vPV}, v{vPG}")
                        pre["S"] += [f"s_cbranch_vccnz {lb}", f"{lb}_ret:"]
                        if lb not in slow: slow.append(lb)
                elif tok == "S":
                    out.append(f"v_smfmac_f32_16x16x64_bf16 {v(LA[qp],4)}, {v(SEL,4)}, {v(P,8)}, v{vIDX}")
                elif tok == "A":
                    out.append(f"{MF} {v(nxt,16)}, {v(F[tn%2],4)}, {v(Qf[qn],4)}, {v(C[qn],16)}")
                elif tok == "B":
                    out.append(f"{MF} {v(nxt,16)}, {v(F[tn%2]+4,4)}, {v(Qf[qn]+4,4)}, {v(nxt,16)}")
                elif tok == "C":
                    out.append(f"{MF} {v(O[qi],16)}, {v(F[t%2]+8,4)}, {v(P,4)}, {v(O[qi],16)}")
                for ins, tag in post[tok]:
                    out.append(ins)
                    if tag: q.issue(tag)
    q = Q("lgkm", 15)
    dummy = []
    for u in range(32): unit(dummy, q, u)
    body = []
    for u in range(32): unit(body, q, u)
    a(".p2align 6")
    a.label(f"{name}_aloop")
    for ln in body: a(ln)
    a(f"s_sub_u32 s{sIT}, s{sIT}, 1")
    a(f"s_cmp_lg_u32 s{sIT}, 0")
    a(f"s_cbranch_scc1 {name}_aloop")
    a(f"{MF} {v(O[1],16)}, {v(F[1]+12,4)}, {v(P+4,4)}, {v(O[1],16)}")
    a(f"v_smfmac_f32_16x16x64_bf16 {v(LA[1],4)}, {v(SEL,4)}, {v(P,8)}, v{vIDX}")
    a(f"v_mov_b32 v{vPG}, {f32(2.0**40)}")
    for qi in range(NQ):
        if qi == 1: a("s_nop 3")
        a(f"v_add_f32 v{LA[qi]}, v{LA[qi]}, v{LA[qi]+1}")
        a(f"v_cmp_nle_f32 vcc, v{LA[qi]}, v{vPG}")
        a("s_nop 1")
        a(f"s_cbranch_vccnz {name}_fb{qi}")
        a.label(f"{name}_ok{qi}")
        a(f"v_rcp_f32 v{vT0}, v{LA[qi]}")
        a("s_nop 0")
        for r in range(16): a(f"v_mul_f32 v{O[qi]+r}, v{O[qi]+r}, v{vT0}")
        for i in range(8): a(f"v_cvt_pk_bf16_f32 v{S[1]+8*qi+i}, v{O[qi]+2*i}, v{O[qi]+2*i+1}")
        for f in range(2):
            a(f"s_add_u32 s{sT1}, s{sOO}, {qi*8192 + f*4096}")
            a(f"buffer_store_dwordx4 {v(S[1]+8*qi+4*f,4)}, v{vL16}, s[{SW}:{SW+3}], s{sT1} offen sc1")
    a(f"s_lshl_b32 s{sT0}, s{sAMT}, 2")
    a(f"s_add_u32 s{sT0}, s{sT0}, s{sAW}")
    a(f"s_mul_i32 s{sT0}, s{sT0}, {FLS}")
    a(f"s_add_u32 s{sT0}, s{sT0}, {FL_OFF + FL_O*FLS}")
    a(f"v_mov_b32 v{vT0}, 1")
    a(f"v_lshlrev_b32 v{vT1}, 24, v0")
    a("s_waitcnt vmcnt(0)")
    a(f"buffer_atomic_add v{vT0}, v{vT1}, s[{SW}:{SW+3}], s{sT0} offen sc1")
    ST.mark(a, 5)
    a(f"s_branch {name}_attdone")
    for lb in slow:
        a.label(lb)
        spin(lb, lb + "_ret")
        a(f"s_branch {lb}_ret")
    for qi in range(NQ):
        a.label(f"{name}_fb{qi}")
        gen_fallback(a, name, qi, Qf[qi], C[qi], O[qi], LA[qi], P, SEL, vIDX, vL16, vT0, vT1, rowmax, xhalf_max)
        a(f"s_branch {name}_ok{qi}")
    a.label(f"{name}_attdone")

def gen_fallback(a, name, qi, Qr, C, O, LA, P, SEL, vIDX, vL16, vT0, vT1, rowmax, xhalf_max):
    F = 192
    vM = 10
    S0 = 208
    PP = 224
    a("s_nop 15")
    a(f"v_mov_b32 v{vM}, 0xff800000")
    a(f"s_mov_b32 s{sT2}, 0")
    a.label(f"{name}_fb1_{qi}")
    for f in range(2):
        a(f"buffer_load_dwordx4 {v(F+4*f,4)}, v{vL16}, s[{SKV}:{SKV+3}], s{sT2} offen offset:{f*1024}")
    a("s_waitcnt vmcnt(0)")
    a(f"{MF} {v(S0,16)}, {v(F,4)}, {v(Qr,4)}, 0")
    a(f"{MF} {v(S0,16)}, {v(F+4,4)}, {v(Qr+4,4)}, {v(S0,16)}")
    a("s_nop 15")
    rowmax(S0, vT0)
    a(f"v_max_f32 v{vM}, v{vM}, v{vT0}")
    a(f"s_add_u32 s{sT2}, s{sT2}, 4096")
    a(f"s_cmp_lt_u32 s{sT2}, {KV_SIZE}")
    a(f"s_cbranch_scc1 {name}_fb1_{qi}")
    xhalf_max(vM, vT1)
    for r in range(16): a(f"v_sub_f32 v{C+r}, 0, v{vM}")
    for r in range(16): a(f"v_mov_b32 v{O+r}, 0")
    for r in range(4): a(f"v_mov_b32 v{LA+r}, 0")
    a(f"s_mov_b32 s{sT2}, 0")
    a.label(f"{name}_fb2_{qi}")
    for f in range(4):
        a(f"buffer_load_dwordx4 {v(F+4*f,4)}, v{vL16}, s[{SKV}:{SKV+3}], s{sT2} offen offset:{f*1024}")
    a("s_waitcnt vmcnt(0)")
    a(f"{MF} {v(S0,16)}, {v(F,4)}, {v(Qr,4)}, {v(C,16)}")
    a(f"{MF} {v(S0,16)}, {v(F+4,4)}, {v(Qr+4,4)}, {v(S0,16)}")
    a("s_nop 15")
    for r in range(16): a(f"v_exp_f32 v{S0+r}, v{S0+r}")
    a("s_nop 0")
    for i in range(8): a(f"v_cvt_pk_bf16_f32 v{PP+i}, v{S0+2*i}, v{S0+2*i+1}")
    a("s_nop 1")
    a(f"{MF} {v(O,16)}, {v(F+8,4)}, {v(PP,4)}, {v(O,16)}")
    a(f"{MF} {v(O,16)}, {v(F+12,4)}, {v(PP+4,4)}, {v(O,16)}")
    a(f"v_smfmac_f32_16x16x64_bf16 {v(LA,4)}, {v(SEL,4)}, {v(PP,8)}, v{vIDX}")
    a("s_nop 7")
    a(f"s_add_u32 s{sT2}, s{sT2}, 4096")
    a(f"s_cmp_lt_u32 s{sT2}, {KV_SIZE}")
    a(f"s_cbranch_scc1 {name}_fb2_{qi}")
    a("s_nop 15")
    a(f"v_add_f32 v{LA}, v{LA}, v{LA+1}")

GACC = 128
def gacc(nb, rb): return GACC + (rb * 2 + nb) * 16

def gen_gemm(a, name, ST):
    vL16, vB0, vB1, vR0, vR1, vFO, vFT = 1, 4, 5, 6, 7, 8, 9
    t0, t1, t2, t3 = 10, 11, 12, 13
    BF = [16, 24]
    AF = [32 + 16 * i for i in range(D)]
    GW = sWAVE
    sAB = sQO
    common(a)
    if 'gprio' in EXP: a("s_setprio 2")
    srd(a, SWC, 6, 7340032)
    a(f"v_lshlrev_b32 v{vL16}, 4, v0")
    a(f"v_lshrrev_b32 v{t0}, 3, v0")
    a(f"v_lshlrev_b32 v{t0}, 11, v{t0}")
    a(f"v_and_b32 v{t1}, 7, v0")
    a(f"v_bfe_u32 v{t2}, v0, 4, 1")
    a(f"v_lshlrev_b32 v{t2}, 2, v{t2}")
    a(f"v_xor_b32 v{t1}, v{t1}, v{t2}")
    a(f"v_lshl_add_u32 v{t0}, v{t1}, 4, v{t0}")
    a(f"s_lshl_b32 s{sT0}, s{sNT}, 7")
    a(f"s_lshl_b32 s{sT1}, s{GW}, 15")
    a(f"s_add_u32 s{sT0}, s{sT0}, s{sT1}")
    a(f"v_add_u32 v{vB0}, s{sT0}, v{t0}")
    a(f"v_add_u32 v{vB1}, {16384 - 1024}, v{vB0}")
    a(f"s_mul_i32 s{sM0}, s{GW}, {D*2048}")
    a(f"s_add_u32 s{sM0}, s{sM0}, {LDS_GB}")
    a(f"s_mul_i32 s{sOO}, s{sMT}, {A2_MT}")
    a(f"s_lshl_b32 s{sT0}, s{GW}, 12")
    a(f"s_add_u32 s{sOO}, s{sOO}, s{sT0}")
    a(f"s_add_u32 s{sAB}, s{sOO}, {64*4096}")
    a(f"s_mul_i32 s{sHS}, s{sMT}, 7")
    a(f"s_lshr_b32 s{sHS}, s{sHS}, 1")
    if 'g2fix' in EXP: a(f"s_mov_b32 s{sHS}, 0")
    a(f"v_bfe_u32 v{t0}, v0, 4, 1")
    a(f"v_and_b32 v{t2}, 3, v0")
    a(f"v_lshlrev_b32 v{t0}, 5, v{t0}")
    a(f"v_lshl_add_u32 v{t0}, v{t2}, 3, v{t0}")
    a(f"v_bfe_u32 v{t2}, v0, 2, 2")
    a(f"v_lshrrev_b32 v{t1}, 5, v0")
    a(f"v_lshl_add_u32 v{t1}, v{t1}, 2, v{t2}")
    a(f"v_bfe_u32 v{t3}, v0, 3, 1")
    a(f"v_lshlrev_b32 v{t3}, 6, v{t3}")
    a(f"v_xor_b32 v{t3}, v{t3}, v{t0}")
    a(f"v_lshl_add_u32 v{t3}, v{t1}, 7, v{t3}")
    a(f"v_add_u32 v{vR0}, s{sM0}, v{t3}")
    a(f"v_xor_b32 v{vR1}, 64, v{vR0}")
    a(f"v_lshrrev_b32 v{t0}, 2, v0")
    a(f"v_mul_u32_u24 v{vFO}, {FLS}, v0")
    a(f"v_lshl_add_u32 v{vFO}, v{t0}, 24, v{vFO}")
    a(f"v_mov_b32 v{vFT}, 0")
    a(f"v_cmp_gt_u32 vcc, 4, v0")
    a("s_nop 1")
    a(f"v_cndmask_b32 v{vFT}, v{vFT}, 12, vcc")
    a(f"v_cmp_eq_u32 vcc, 3, v0")
    a("s_nop 1")
    a(f"v_cndmask_b32 v{vFT}, v{vFT}, 14, vcc")
    for r in range(GACC, 256): a(f"v_mov_b32 v{r}, 0")
    vGO = 14
    a(f"v_mov_b32 v{vGO}, {LDS_PROG + 8}")
    def poll(lbl, line, stage):
        a(f"s_mul_i32 s{sT3}, s{sMT}, {4*FLS}")
        a(f"s_add_u32 s{sT3}, s{sT3}, {FL_OFF + line*FLS}")
        a(f"s_mov_b32 s{sSPIN}, 0")
        a.label(lbl)
        a(f"s_add_u32 s{sSPIN}, s{sSPIN}, 1")
        a(f"s_cmp_gt_u32 s{sSPIN}, 0x100000")
        a(f"s_cbranch_scc1 {lbl}_ok")
        a(f"s_cmp_eq_u32 s{GW}, 0")
        a(f"s_cbranch_scc0 {lbl}_f")
        a(f"buffer_load_dword v{t0}, v{vFO}, s[{SW}:{SW+3}], s{sT3} offen sc1")
        a("s_waitcnt vmcnt(0)")
        a(f"v_cmp_gt_u32 vcc, v{vFT}, v{t0}")
        a(f"v_mov_b32 v{t0}, {stage}")
        a(f"s_cbranch_vccz {lbl}_set")
        a(f"s_sleep {os.environ.get('SLG', '8')}")
        a(f"s_branch {lbl}")
        a.label(f"{lbl}_f")
        a(f"ds_read_b32 v{t0}, v{vGO}")
        a("s_waitcnt lgkmcnt(0)")
        a(f"v_readfirstlane_b32 s{sT0}, v{t0}")
        a(f"s_cmp_ge_u32 s{sT0}, {stage}")
        a(f"s_cbranch_scc1 {lbl}_ok")
        a("s_sleep 2")
        a(f"s_branch {lbl}")
        a.label(f"{lbl}_set")
        a(f"ds_write_b32 v{vGO}, v{t0}")
        a.label(f"{lbl}_ok")
    poll(f"{name}_ph", FL_H, 1)
    ST.mark(a, 4)
    def ldB(i):
        return [f"s_add_u32 m0, s{sM0}, {i*2048}",
                f"s_lshl_b32 s{sT1}, s{sHS}, 17",
                f"buffer_load_dwordx4 v{vB0}, s[{SWC}:{SWC+3}], s{sT1} offen lds",
                f"buffer_load_dwordx4 v{vB1}, s[{SWC}:{SWC+3}], s{sT1} offen offset:1024 lds",
                f"s_lshl_b32 s{sT2}, s{sHS}, 14",
                f"s_add_u32 s{sT2}, s{sT2}, s{sAB}",
                f"s_add_u32 s{sHS}, s{sHS}, 1",
                f"s_cmp_eq_u32 s{sHS}, 56",
                f"s_cselect_b32 s{sHS}, 0, s{sHS}"]
    def ldA(i, rb):
        return f"buffer_load_dwordx4 {v(AF[i]+4*rb,4)}, v{vL16}, s[{SW}:{SW+3}], s{sT2} offen offset:{rb*1024} sc1"
    for i in range(D):
        for ln in ldB(i): a(ln)
        for rb in range(4): a(ldA(i, rb))
    def rdB(i):
        b = BF[i % 2]
        return [f"ds_read_b64_tr_b16 {v(b+4*nb+2*j,2)}, v{vR0+nb} offset:{(i%D)*2048 + j*1024}" for nb in range(2) for j in range(2)]
    a(f"s_waitcnt vmcnt({6*D - 2})")
    for ln in rdB(0): a(ln)
    def step(i, load):
        n = 4 + 6 * (D - 2) if load else max(0, 4 + 6 * (D - 2 - i))
        if not load and i == D - 1: n = 0
        a(f"s_waitcnt vmcnt({n}) lgkmcnt(0)")
        rds = rdB(i + 1) if (load or i < D - 1) else []
        lb = ldB(i) if load else []
        k = 0
        for rb in range(4):
            for nb in range(2):
                c = v(gacc(nb, rb), 16)
                a(f"{MF} {c}, {v(BF[i%2]+4*nb,4)}, {v(AF[i]+4*rb,4)}, {c}")
                if k == 0:
                    for ln in rds: a(ln)
                    for ln in lb: a(ln)
                if nb == 1 and load: a(ldA(i, rb))
                k += 1
    NIT = 72 // D
    sw_it, sw_pos = (56 - D) // D, (56 - D) % D
    a(f"s_mov_b32 s{sIT}, 0")
    a(".p2align 6")
    a.label(f"{name}_gloop")
    for i in range(D):
        if i == sw_pos:
            a(f"s_cmp_eq_u32 s{sIT}, {sw_it}")
            a(f"s_cbranch_scc1 {name}_gsw")
            a.label(f"{name}_gsw_ret")
        step(i, True)
    a(f"s_add_u32 s{sIT}, s{sIT}, 1")
    a(f"s_cmp_lt_u32 s{sIT}, {NIT - 1}")
    a(f"s_cbranch_scc1 {name}_gloop")
    for i in range(D): step(i, False)
    a(f"s_branch {name}_final")
    a.label(f"{name}_gsw")
    a(f"s_mov_b32 s{SWC}, s4")
    a(f"s_mov_b32 s{SWC+1}, s5")
    a(f"s_mov_b32 s{SWC+2}, 2097152")
    a(f"s_mov_b32 s{sHS}, 0")
    a(f"s_mov_b32 s{sAB}, s{sOO}")
    a(f"s_lshl_b32 s{sT0}, s2, 2")
    a(f"s_add_u32 s{sT0}, s{sT0}, s{GW}")
    a(f"s_lshl_b32 s{sT0}, s{sT0}, 11")
    a(f"v_and_b32 v{t1}, 31, v0")
    a(f"v_lshlrev_b32 v{t1}, 6, v{t1}")
    a(f"buffer_load_dword v{t2}, v{t1}, s[{SWC}:{SWC+3}], s{sT0} offen")
    a(f"v_min_u32 v{vFT}, 1, v{vFT}")
    a(f"v_lshlrev_b32 v{vFT}, 4, v{vFT}")
    poll(f"{name}_po", FL_O, 2)
    ST.mark(a, 5)
    a(f"s_branch {name}_gsw_ret")

def gen_final(a, name, ST):
    ST.mark(a, 6)
    vX, vB2, vOA, vRA = 96, 104, 108, 110
    a(f"v_lshrrev_b32 v2, 3, v0")
    a(f"v_and_b32 v3, 7, v0")
    a(f"s_lshl_b32 s{sT0}, s{sMT}, 7")
    a(f"s_lshl_b32 s{sT1}, s{sWAVE}, 4")
    a(f"s_add_u32 s{sT0}, s{sT0}, s{sT1}")
    a(f"s_lshl_b32 s{sT0}, s{sT0}, 11")
    a(f"s_lshl_b32 s{sT2}, s{sNT}, 7")
    a(f"s_add_u32 s{sT0}, s{sT0}, s{sT2}")
    a(f"s_add_u32 s{sT1}, s{sT0}, 16384")
    a(f"v_lshlrev_b32 v4, 4, v3")
    a(f"v_lshl_add_u32 v{vOA}, v2, 11, v4")
    a(f"buffer_load_dwordx4 {v(vX,4)}, v{vOA}, s[{SX}:{SX+3}], s{sT0} offen")
    a(f"buffer_load_dwordx4 {v(vX+4,4)}, v{vOA}, s[{SX}:{SX+3}], s{sT1} offen")
    a(f"buffer_load_dwordx4 {v(vB2,4)}, v4, s[{SB2}:{SB2+3}], s{sT2} offen")
    a(f"v_mul_u32_u24 v{vRA}, {RED_STRIDE}, v2")
    a(f"v_lshl_add_u32 v{vRA}, v3, 5, v{vRA}")
    a(f"s_mul_i32 s{sT3}, s{sWAVE}, {16*RED_STRIDE}")
    a(f"v_add_u32 v{vRA}, s{sT3}, v{vRA}")
    a(f"v_add_u32 v{vRA+1}, {2*RED_PART}, v{vRA}")
    a("s_waitcnt vmcnt(3) lgkmcnt(0)")
    a("s_barrier")
    a(f"s_cmp_ge_u32 s{sWAVE}, 4")
    a(f"s_cbranch_scc1 {name}_fin2")
    a(f"v_and_b32 v2, 31, v0")
    a(f"v_mul_u32_u24 v2, {RED_STRIDE}, v2")
    a(f"v_lshrrev_b32 v3, 5, v0")
    a(f"v_lshl_add_u32 v2, v3, 4, v2")
    a(f"s_mul_i32 s{sT3}, s{sWAVE}, {RED_PART}")
    a(f"v_add_u32 v2, s{sT3}, v2")
    for rb in range(4):
        for nb in range(2):
            for g in range(4):
                a(f"ds_write_b128 v2, {v(gacc(nb,rb)+4*g,4)} offset:{rb*32*RED_STRIDE + nb*128 + g*32}")
    a("s_waitcnt lgkmcnt(0)")
    a.label(f"{name}_fin2")
    a("s_barrier")
    Dd = 16
    for rg in range(2):
        for p in range(4):
            for hh in range(2):
                a(f"ds_read_b128 {v(Dd + rg*32 + p*8 + hh*4, 4)}, v{vRA + p//2} offset:{(p%2)*RED_PART + rg*8*RED_STRIDE + hh*16}")
    a("s_waitcnt vmcnt(0)")
    for i in range(4):
        a(f"v_lshlrev_b32 v{80+2*i}, 16, v{vB2+i}")
        a(f"v_and_b32 v{80+2*i+1}, 0xffff0000, v{vB2+i}")
    for rg in range(2):
        for i in range(4):
            a(f"v_lshlrev_b32 v{88+2*i}, 16, v{vX+4*rg+i}")
            a(f"v_and_b32 v{88+2*i+1}, 0xffff0000, v{vX+4*rg+i}")
        for i in range(0, 8, 2):
            a(f"v_pk_add_f32 {v(88+i,2)}, {v(88+i,2)}, {v(80+i,2)}")
        a(f"s_waitcnt lgkmcnt({8 if rg == 0 else 0})")
        b = Dd + rg * 32
        for i in range(0, 8, 2):
            a(f"v_pk_add_f32 {v(b+i,2)}, {v(b+i,2)}, {v(b+8+i,2)}")
            a(f"v_pk_add_f32 {v(b+16+i,2)}, {v(b+16+i,2)}, {v(b+24+i,2)}")
        for i in range(0, 8, 2):
            a(f"v_pk_add_f32 {v(b+i,2)}, {v(b+i,2)}, {v(b+16+i,2)}")
        for i in range(0, 8, 2):
            a(f"v_pk_add_f32 {v(b+i,2)}, {v(b+i,2)}, {v(88+i,2)}")
        for i in range(4):
            a(f"v_cvt_pk_bf16_f32 v{b+8+i}, v{b+2*i}, v{b+2*i+1}")
        a(f"buffer_store_dwordx4 {v(b+8,4)}, v{vOA}, s[{SO}:{SO+3}], s{sT0 if rg == 0 else sT1} offen")
    ST.flush(a, 7, SW, sWAVE, ST_OFF)
```

```python
A2_OFF = 0
A2_MT = 288 * 4096
A2_SIZE = 16 * A2_MT
QF_OFF = A2_SIZE
QF_MT = 64 * 4096
QF_SIZE = 16 * QF_MT
KV_OFF = QF_OFF + QF_SIZE
KV_SIZE = 64 * 4096
RS_OFF = KV_OFF + KV_SIZE
RS_SIZE = 4 * 8192
CS_OFF = RS_OFF + RS_SIZE
CS_SIZE = 32 * 8 * 1024
FL_OFF = CS_OFF + CS_SIZE
import os
FLS = int(os.environ.get('FLS', '256'))
FL_SIZE = 256 * 256
FL_H, FL_O, FL_A = 0, 64, 128
ST_OFF = FL_OFF + FL_SIZE
ST_SIZE = 4 * 256 * 8 * 64
WS_USED = ST_OFF + ST_SIZE
KA = dict(x=0, wq=8, wk=16, wv=24, wo=32, bx=40, w1=48, b1=56, w2=64, b2=72, out=80, dbg=88, ws=96)
```

```python
import sys, os
sys.path.insert(0, os.path.dirname(__file__))
from k2 import gen_k2
from k3 import gen_k3

HEADER = """; Kernarg layout for this problem (104 bytes, ptrs only, base s[0:1]):
"""

def kd(name, vgpr=256, sgpr=102):
    return f""".p2align 6
.amdhsa_kernel {name}
  .amdhsa_next_free_vgpr {vgpr}
  .amdhsa_next_free_sgpr {sgpr}
  .amdhsa_accum_offset {vgpr}
  .amdhsa_group_segment_fixed_size 0
  .amdhsa_kernarg_size 104
  .amdhsa_user_sgpr_count 2
  .amdhsa_user_sgpr_kernarg_segment_ptr 1
  .amdhsa_system_sgpr_workgroup_id_x 1
.end_amdhsa_kernel"""

def build(kernels, path):
    out = [HEADER.rstrip()]
    for name, _, grid, block, lds in kernels:
        out.append(f"; @launch kernel={name} grid=({grid},1,1) block=({block},1,1) lds={lds}")
    out.append('.amdgcn_target "amdgcn-amd-amdhsa--gfx950"\n.text\n.p2align 8\ncode_begin:')
    seen = set()
    for name, text, *_ in kernels:
        if name not in seen:
            out.append(text); seen.add(name)
    out.append('code_end:')
    out.append('.section .rodata,"a"')
    for name in dict.fromkeys(k[0] for k in kernels):
        out.append(kd(name))
    open(path, "w").write("\n".join(out) + "\n")

if __name__ == "__main__":
    cfg = sys.argv[1] if len(sys.argv) > 1 else "k2"
    path = sys.argv[2] if len(sys.argv) > 2 else "out.s"
    ks = []
    st = "stamps" in sys.argv
    NQ = int(os.environ.get("NQ", "1"))
    if cfg == "v3":
        import k4
        ks.append(("fused_kernel", gen_k2("fused_kernel", stamps=st, phase2=k4.phase2), 256, 512, 163840))
    else: ks.append(("g1_kernel", gen_k2("g1_kernel", stamps=st, stflag=os.environ.get("STFLAG", "sc1")), 256, 512, 163840))
    if cfg == "v1":
        ks.append(("att_kernel", gen_k3("att_kernel", True, False, NQ, st, 1), 256, 512, 163840))
        ks.append(("g2_kernel", gen_k3("g2_kernel", False, True, NQ, st, 2), 256, 512, 163840))
    if cfg == "v2":
        ks.append(("k3_kernel", gen_k3("k3_kernel", True, True, NQ, st, 1), 256, 512, 163840))
    for i in range(int(os.environ.get("EMPTY", "0"))):
        ks.append(("nop_kernel", ".globl nop_kernel\n.p2align 8\n.type nop_kernel,@function\nnop_kernel:\n  s_endpgm", 256, 512, 0))
    build(ks, path)
```

```python
class Asm:
    def __init__(self):
        self.lines = []
        self.nlabel = 0
    def __call__(self, s):
        for ln in s.split("\n"):
            ln = ln.strip()
            if ln:
                self.lines.append(("" if ln.endswith(":") else "  ") + ln)
    def label(self, name):
        self.lines.append(f"{name}:")
    def newlabel(self, stem):
        self.nlabel += 1
        return f"L_{stem}_{self.nlabel}"
    def comment(self, s):
        self.lines.append(f"  ; {s}")
    def text(self):
        return "\n".join(self.lines)

def v(a, n=1):
    return f"v{a}" if n == 1 else f"v[{a}:{a+n-1}]"
def s(a, n=1):
    return f"s{a}" if n == 1 else f"s[{a}:{a+n-1}]"

import struct
def f32(x):
    return "0x%08x" % struct.unpack("<I", struct.pack("<f", x))[0]

class Q:
    def __init__(self, name, maxn):
        self.name, self.maxn = name, maxn
        self.issued = []
        self.done = 0
    def issue(self, tag):
        self.issued.append(tag)
    def need(self, tags):
        idx = -1
        for t in tags:
            for i in range(len(self.issued) - 1, -1, -1):
                if self.issued[i] == t:
                    idx = max(idx, i)
                    break
        if idx < self.done:
            return None
        n = len(self.issued) - 1 - idx
        n = min(n, self.maxn)
        self.done = len(self.issued) - n
        return n
    def drain(self):
        self.done = len(self.issued)


class Stamps:
    def __init__(self, on, base=76, kidx=0):
        self.on, self.base, self.kidx = on, base, kidx
    def mark(self, a, i, force=False):
        import os
        if not self.on: return
        if 'stl' in os.environ.get('EXP', '') and 2 <= i <= 6 and not force: return
        b = self.base
        a(f"s_memtime s[{b}:{b+1}]")
        a(f"s_memrealtime s[{b+2}:{b+3}]")
        a("s_waitcnt lgkmcnt(0)")
        a(f"s_mov_b32 s{b+4+2*i}, s{b}")
        a(f"s_mov_b32 s{b+5+2*i}, s{b+2}")
    def flush(self, a, n, srd, swave, st_off, vt=2):
        if not self.on: return
        a("s_waitcnt vmcnt(0) lgkmcnt(0)")
        self.mark(a, n)
        a(f"s_lshl_b32 s3, s2, 3")
        a(f"s_add_u32 s3, s3, s{swave}")
        a(f"s_lshl_b32 s3, s3, 6")
        a(f"s_add_u32 s3, s3, {st_off + self.kidx * 256 * 8 * 64}")
        a(f"v_mov_b32 v{vt}, 0")
        for i in range(2 * n + 2):
            a(f"v_mov_b32 v{vt+1}, s{self.base + 4 + i}")
            a(f"buffer_store_dword v{vt+1}, v{vt}, s[{srd}:{srd+3}], s3 offen offset:{i*4}")
            a("s_nop 1")
```

```python
import math
from asmlib import *
from layout import *

LDS_A = 0
LDS_B = 98304
LDS_M = 159744
SLOT_B = 20480
QSCALE = (32 ** -0.5) * math.log2(math.e)
G_C0 = -2.0 * math.sqrt(2.0 / math.pi) * math.log2(math.e)
G_C1 = G_C0 * 0.044715

SX, SB, SS, SW, SB1, SD = 24, 28, 32, 36, 40, 44
sMT, sCW, sFLIP, sCBM, sCBS, sLDW, sLDS, sWAVE, sTYPE = 48, 49, 50, 51, 52, 53, 54, 55, 56
sT0, sT1, sT2, sT3, sT4, sT5 = 57, 58, 59, 60, 61, 62
sPH, sKT, sSA, sSB, sOA, sOB, sOS, sSTB, sSTS = 63, 64, 65, 66, 67, 68, 69, 70, 71
sCSL = 74
sWI = 75
sPFM = 74
import os
EXP = os.environ.get('EXP', '')
DEFER = int(os.environ.get('DEFER', '4'))
BARAT = int(os.environ.get('BARAT', '3'))

def srd(a, base, ptr, size):
    a(f"s_mov_b32 s{base}, s{ptr}")
    a(f"s_mov_b32 s{base+1}, s{ptr+1}")
    a(f"s_mov_b32 s{base+2}, {size}")
    a(f"s_mov_b32 s{base+3}, 0x20000")

ST = Stamps(False)
FUSED = False
def gen_k2(name, stflag="sc1", stamps=False, phase2=None):
    global ST, FUSED
    FUSED = phase2 is not None
    ST = Stamps(stamps, 76, 0)
    a = Asm()
    a(f".globl {name}\n.p2align 8\n.type {name},@function")
    a.label(name)
    a("s_cmp_ge_u32 s2, 256")
    a(f"s_cbranch_scc1 {name}_exit")
    ST.mark(a, 0)
    a("s_load_dwordx8 s[8:15], s[0:1], 0")
    a("s_load_dwordx4 s[16:19], s[0:1], 48")
    a("s_load_dwordx4 s[20:23], s[0:1], 88")
    a("s_load_dwordx2 s[4:5], s[0:1], 32")
    a("s_load_dwordx2 s[6:7], s[0:1], 64")
    a("s_load_dwordx4 s[96:99], s[0:1], 72")
    a("v_lshrrev_b32 v1, 6, v0")
    a("v_and_b32 v0, 63, v0")
    a(f"v_readfirstlane_b32 s{sWAVE}, v1")
    a(f"s_and_b32 s{sT0}, s2, 7")
    a(f"s_lshr_b32 s{sT1}, s2, 3")
    a(f"s_and_b32 s{sMT}, s{sT0}, 1")
    a(f"s_lshl_b32 s{sMT}, s{sMT}, 2")
    a(f"s_and_b32 s{sT2}, s{sT1}, 3")
    a(f"s_add_u32 s{sMT}, s{sMT}, s{sT2}")
    a(f"s_lshr_b32 s{sT0}, s{sT0}, 1")
    a(f"s_lshr_b32 s{sT2}, s{sT1}, 2")
    a(f"s_mul_i32 s{sCW}, s{sT0}, 6")
    a(f"s_lshl_b32 s{sT0}, s{sT0}, 1")
    a(f"s_add_u32 s{sT0}, s{sT0}, 18")
    a(f"s_cmp_lt_u32 s{sT2}, 6")
    a(f"s_cselect_b32 s{sCW}, s{sCW}, s{sT0}")
    a(f"s_add_u32 s{sCW}, s{sCW}, s{sT2}")
    a(f"s_lshr_b32 s{sT0}, s{sCW}, 2")
    a(f"s_and_b32 s{sT1}, s{sCW}, 3")
    a(f"s_mul_i32 s{sT0}, s{sT0}, 18")
    a(f"s_lshl_b32 s{sCBM}, s{sT1}, 2")
    a(f"s_add_u32 s{sCBM}, s{sCBM}, s{sT0}")
    a(f"s_lshr_b32 s{sCBS}, s{sT1}, 1")
    a(f"s_add_u32 s{sCBS}, s{sCBS}, s{sT0}")
    a(f"s_add_u32 s{sCBS}, s{sCBS}, 16")
    a(f"s_and_b32 s{sFLIP}, s{sT1}, 1")
    a(f"s_mov_b32 s{sTYPE}, 0")
    a(f"s_mov_b32 s{sLDW}, 7168")
    a(f"s_mov_b32 s{sLDS}, 7168")
    a("s_waitcnt lgkmcnt(0)")
    srd(a, SX, 8, 4194304)
    srd(a, SB, 16, 7340032)
    srd(a, SS, 16, 7340032)
    srd(a, SW, 22, WS_USED)
    srd(a, SB1, 18, 7168)
    srd(a, SD, 20, 256)
    a(f"s_cmp_lt_u32 s{sCW}, 24")
    a(f"s_cbranch_scc1 {name}_dec")
    a(f"s_mov_b32 s{sFLIP}, 0")
    a(f"s_cmp_eq_u32 s{sCW}, 31")
    a(f"s_cbranch_scc0 {name}_nh4")
    a(f"s_mov_b32 s{sCBM}, 108")
    a(f"s_mov_b32 s{sCBS}, 108")
    a(f"s_branch {name}_dec")
    a.label(f"{name}_nh4")
    a(f"s_sub_u32 s{sT0}, s{sCW}, 24")
    a(f"s_lshl_b32 s{sCBM}, s{sT0}, 2")
    a(f"s_mov_b32 s{sCBS}, s{sCW}")
    a(f"s_mov_b32 s{sTYPE}, 1")
    a(f"s_mov_b32 s{sLDW}, 2048")
    a(f"s_mov_b32 s{sLDS}, 2048")
    a(f"s_mov_b32 s{SB}, s10\ns_mov_b32 s{SB+1}, s11\ns_mov_b32 s{SB+2}, 2097152")
    a(f"s_mov_b32 s{SS}, s10\ns_mov_b32 s{SS+1}, s11\ns_mov_b32 s{SS+2}, 2097152")
    a(f"s_cmp_eq_u32 s{sCW}, 30")
    a(f"s_cbranch_scc0 {name}_dec")
    a(f"s_mov_b32 s{sTYPE}, 2")
    a(f"s_mov_b32 s{sCBM}, 30")
    a(f"s_mov_b32 s{sCBS}, 0")
    a(f"s_mov_b32 s{sLDS}, 64")
    a(f"s_mov_b32 s{SS}, s12\ns_mov_b32 s{SS+1}, s13\ns_mov_b32 s{SS+2}, 65536")
    a(f"s_cmp_ge_u32 s{sWAVE}, 6")
    a(f"s_cbranch_scc0 {name}_dec")
    a(f"s_mov_b32 s{sLDW}, 64")
    a(f"s_mov_b32 s{SB}, s14\ns_mov_b32 s{SB+1}, s15\ns_mov_b32 s{SB+2}, 65536")
    a.label(f"{name}_dec")
    a(f"s_cmp_ge_u32 s{sWAVE}, 4")
    a(f"s_cbranch_scc1 {name}_loader")
    gen_compute(a, name, stflag)
    a.label(f"{name}_loader")
    gen_loader(a, name)
    if phase2: phase2(a, name, ST)
    a.label(f"{name}_exit")
    a("s_endpgm")
    return a.text()

def gen_loader(a, name):
    vA = 2
    vB = 10
    vS = 14
    vC = 16
    vCA = 26
    vD = 32
    t0, t1, t2, t3 = 96, 97, 98, 99
    LW = sT5
    a(f"s_sub_u32 s{LW}, s{sWAVE}, 4")
    if 'lprio' in EXP: a("s_setprio 1")
    if not FUSED: ST.mark(a, 1)
    a(f"v_lshrrev_b32 v{t0}, 3, v0")
    a(f"v_and_b32 v{t1}, 7, v0")
    a(f"v_lshrrev_b32 v{t2}, 4, v0")
    a(f"v_xor_b32 v{t1}, v{t1}, v{t2}")
    a(f"v_lshlrev_b32 v{t0}, 11, v{t0}")
    a(f"v_lshl_add_u32 v{t3}, v{t1}, 4, v{t0}")
    a(f"s_lshl_b32 s{sT0}, s{sMT}, 8")
    a(f"s_lshl_b32 s{sT1}, s{LW}, 6")
    a(f"s_add_u32 s{sT0}, s{sT0}, s{sT1}")
    a(f"s_lshl_b32 s{sT0}, s{sT0}, 11")
    a(f"s_lshl_b32 s{sT1}, s{sFLIP}, 16")
    for q in range(8):
        a(f"s_xor_b32 s{sT2}, s{sT1}, {q*16384}")
        a(f"s_add_u32 s{sT2}, s{sT2}, s{sT0}")
        a(f"s_sub_u32 s{sT2}, s{sT2}, {(q%4)*1024}")
        if q % 2 == 0:
            a(f"v_add_u32 v{vA+q}, s{sT2}, v{t3}")
        else:
            a(f"v_xor_b32 v{vA+q}, 64, v{t3}")
            a(f"v_add_u32 v{vA+q}, s{sT2}, v{vA+q}")
    a(f"v_lshrrev_b32 v{t0}, 3, v0")
    a(f"v_mul_lo_u32 v{t0}, v{t0}, s{sLDW}")
    a(f"v_and_b32 v{t1}, 7, v0")
    a(f"v_bfe_u32 v{t2}, v0, 4, 1")
    a(f"v_lshlrev_b32 v{t2}, 2, v{t2}")
    a(f"v_xor_b32 v{t1}, v{t1}, v{t2}")
    a(f"v_lshl_add_u32 v{t3}, v{t1}, 4, v{t0}")
    a(f"s_and_b32 s{sT0}, s{LW}, 1")
    a(f"s_lshl_b32 s{sT0}, s{sT0}, 5")
    a(f"s_mul_i32 s{sT0}, s{sT0}, s{sLDW}")
    a(f"s_lshl_b32 s{sT1}, s{sCBM}, 6")
    a(f"s_add_u32 s{sT0}, s{sT0}, s{sT1}")
    a(f"s_lshr_b32 s{sT1}, s{LW}, 1")
    a(f"s_lshl_b32 s{sT1}, s{sT1}, 7")
    a(f"s_add_u32 s{sT0}, s{sT0}, s{sT1}")
    a(f"s_lshl_b32 s{sT1}, s{sLDW}, 3")
    a(f"s_sub_u32 s{sT1}, s{sT1}, 1024")
    for t in range(4):
        a(f"v_add_u32 v{vB+t}, s{sT0}, v{t3}")
        a(f"s_add_u32 s{sT0}, s{sT0}, s{sT1}")
    a(f"s_cmp_eq_u32 s{sLDW}, 64")
    a(f"s_cbranch_scc0 {name}_ld_nv")
    a(f"s_and_b32 s{sT0}, s{LW}, 1")
    a(f"s_lshl_b32 s{sT0}, s{sT0}, 12")
    a(f"v_lshlrev_b32 v{t0}, 4, v0")
    for t in range(4):
        a(f"v_add_u32 v{vB+t}, s{sT0}, v{t0}")
    a.label(f"{name}_ld_nv")
    a(f"v_lshrrev_b32 v{t0}, 2, v0")
    a(f"s_lshl_b32 s{sT0}, s{LW}, 4")
    a(f"v_add_u32 v{t0}, s{sT0}, v{t0}")
    a(f"v_mul_lo_u32 v{t0}, v{t0}, s{sLDS}")
    a(f"v_and_b32 v{t1}, 3, v0")
    a(f"v_lshl_add_u32 v{t0}, v{t1}, 4, v{t0}")
    a(f"s_lshl_b32 s{sT0}, s{sCBS}, 6")
    a(f"v_add_u32 v{vS}, s{sT0}, v{t0}")
    if 'rotall' not in EXP: a(f"s_mov_b32 s{sKT}, 0")
    elif 'norot' not in EXP: a(f"s_lshl_b32 s{sKT}, s{sMT}, 1")
    else: a(f"s_mov_b32 s{sKT}, 0")
    a(f"s_lshl_b32 s{sSTB}, s{sLDW}, 6")
    a(f"s_lshl_b32 s{sSTS}, s{sLDS}, 6")
    a(f"s_mul_i32 s{sSA}, s{LW}, 24576")
    a(f"s_lshl_b32 s{sSB}, s{LW}, 12")
    a(f"s_add_u32 s{sSB}, s{sSB}, {LDS_B}")
    a(f"s_mul_i32 s{sT4}, s{LW}, 3072")
    a(f"s_sub_u32 s{sT4}, 16384, s{sT4}")
    a(f"s_mov_b32 s{sT3}, 0")

    A0 = a
    def issue(fill=None):
        a0 = A0
        fill = list(fill or [])
        per = -(-len(fill) // 11) if fill else 0
        cnt = [0]
        def a(ln):
            a0(ln)
            if ln.startswith("buffer_load"):
                cnt[0] += 1
                if cnt[0] >= 2:
                    for _ in range(per):
                        if fill: a0(fill.pop(0))
        a(f"s_lshl_b32 s{sOA}, s{sKT}, 7")
        a(f"s_mul_i32 s{sOB}, s{sKT}, s{sSTB}")
        a(f"s_mul_i32 s{sOS}, s{sKT}, s{sSTS}")
        a(f"s_mov_b32 m0, s{sSB}")
        a(f"s_add_u32 s{sKT}, s{sKT}, 1")
        for t in range(4):
            a(f"buffer_load_dwordx4 v{vB+t}, s[{SB}:{SB+3}], s{sOB} offen offset:{t*1024} lds")
        a(f"s_mov_b32 m0, s{sSA}")
        if 'rotall' not in EXP:
            a(f"s_cmp_eq_u32 s{sKT}, 16")
            a(f"s_cselect_b32 s{sKT}, 1, s{sKT}")
        else: a(f"s_and_b32 s{sKT}, s{sKT}, 15")
        for q in range(4):
            a(f"buffer_load_dwordx4 v{vA+q}, s[{SX}:{SX+3}], s{sOA} offen offset:{q*1024} lds")
        a(f"s_add_u32 m0, s{sSA}, 4096")
        a(f"s_add_u32 s{sT3}, s{sT3}, 1")
        for q in range(4, 8):
            a(f"buffer_load_dwordx4 v{vA+q}, s[{SX}:{SX+3}], s{sOA} offen offset:{(q%4)*1024} lds")
        a(f"s_add_u32 m0, s{sSB}, s{sT4}")
        a(f"s_add_u32 s{sSA}, s{sSA}, 8192")
        a(f"buffer_load_dwordx4 v{vS}, s[{SS}:{SS+3}], s{sOS} offen lds")
        a(f"s_add_u32 s{sSB}, s{sSB}, {SLOT_B}")
        a(f"s_cmp_eq_u32 s{sT3}, 3")
        a(f"s_cselect_b32 s{sT0}, 24576, 0")
        a(f"s_cselect_b32 s{sT1}, {3*SLOT_B}, 0")
        a(f"s_cselect_b32 s{sT3}, 0, s{sT3}")
        a(f"s_sub_u32 s{sSA}, s{sSA}, s{sT0}")
        a(f"s_sub_u32 s{sSB}, s{sSB}, s{sT1}")
        for ln in fill: a0(ln)

    if not FUSED: ST.mark(a, 2)
    issue()
    if 'rotall' not in EXP:
        a(f"s_lshl_b32 s{sKT}, s{sMT}, 1")
        a(f"s_add_u32 s{sKT}, s{sKT}, 1")
    issue()
    if not FUSED: ST.mark(a, 3)
    g_, r_, c_, hf_ = 100, 101, 102, 103
    a(f"v_bfe_u32 v{g_}, v0, 4, 1")
    a(f"v_bfe_u32 v{r_}, v0, 2, 2")
    a(f"v_and_b32 v{c_}, 3, v0")
    a(f"v_lshrrev_b32 v{hf_}, 5, v0")
    a(f"v_lshlrev_b32 v{t0}, 5, v{g_}")
    a(f"v_lshl_add_u32 v{t0}, v{c_}, 3, v{t0}")
    a(f"v_lshl_add_u32 v{t1}, v{hf_}, 3, v{r_}")
    a(f"v_lshrrev_b32 v{t2}, 1, v{r_}")
    a(f"s_and_b32 s{sT0}, s{LW}, 1")
    a(f"v_xor_b32 v{t2}, s{sT0}, v{t2}")
    a(f"v_lshlrev_b32 v{t2}, 6, v{t2}")
    a(f"v_xor_b32 v{t2}, v{t2}, v{t0}")
    a(f"v_lshl_add_u32 v{t2}, v{t1}, 7, v{t2}")
    a(f"s_lshr_b32 s{sT0}, s{LW}, 1")
    a(f"s_lshl_b32 s{sT0}, s{sT0}, 13")
    a(f"v_add_u32 v{t2}, s{sT0}, v{t2}")
    a(f"v_lshl_add_u32 v{t3}, v{t1}, 6, v{t0}")
    for i in range(8):
        a(f"v_add_u32 v{vC+i}, {LDS_B + (i//2)*2048 + (i%2)*512}, v{t2}")
    a(f"s_cmp_eq_u32 s{sLDW}, 64")
    a(f"s_cbranch_scc0 {name}_ld_nv2")
    for i in range(8):
        a(f"v_add_u32 v{vC+i}, {LDS_B + 8192 + (i//2)*1024 + (i%2)*256}, v{t3}")
    a.label(f"{name}_ld_nv2")
    a(f"s_lshl_b32 s{sT0}, s{LW}, 10")
    a(f"v_add_u32 v{t3}, s{sT0}, v{t3}")
    for j in range(2):
        a(f"v_add_u32 v{vC+8+j}, {LDS_B + 16384 + j*256}, v{t3}")
    for i in range(4):
        a(f"v_mov_b32 v{vCA+i}, 0")
    a(f"s_mov_b32 s{sCSL}, 0")
    a(f"v_lshlrev_b32 v81, 2, v0")
    a("s_waitcnt vmcnt(13)")
    ST.mark(a, 1 if FUSED else 4)
    a("s_barrier")

    def cs_read():
        for i in range(10):
            a(f"ds_read_b64_tr_b16 v[{vD+2*i}:{vD+2*i+1}], v{vC+i}")
        a(f"s_add_u32 s{sCSL}, s{sCSL}, 1")
        a(f"s_cmp_eq_u32 s{sCSL}, 3")
        a(f"s_cselect_b32 s{sT0}, {3*SLOT_B}, 0")
        a(f"s_cselect_b32 s{sCSL}, 0, s{sCSL}")
        a(f"s_sub_u32 s{sT0}, {SLOT_B}, s{sT0}")
        for i in range(10):
            a(f"v_add_u32 v{vC+i}, s{sT0}, v{vC+i}")
    def cs_add(lst=False):
        o = []
        a = o.append
        a("s_waitcnt lgkmcnt(0)")
        for i in range(0 if 'nocs' in EXP else 10):
            b = 0 if i < 8 else 2
            for k in range(2):
                r = vD + 2 * i + k
                a(f"v_lshlrev_b32 v{t0}, 16, v{r}")
                a(f"v_and_b32 v{t1}, 0xffff0000, v{r}")
                a(f"v_add_f32 v{vCA+b}, v{vCA+b}, v{t0}")
                a(f"v_add_f32 v{vCA+b+1}, v{vCA+b+1}, v{t1}")
        if lst: return o
        for ln in o: A0(ln)

    vX = 64
    vP = 80
    cs_read()
    issue(cs_add(True))
    a(f"s_lshl_b32 s{sWI}, s2, 2")
    a(f"s_add_u32 s{sWI}, s{sWI}, s{LW}")
    nb_ = 0
    if 'norot' in EXP:
        nb_ += pf(a, 16, 192 * 7168, 5824, 144, t0)
        nb_ += pf(a, 10, 192 * 2048, 1664, 144, t0)
        nb_ += pf(a, 12, 0, 64, 144, t0)
        nb_ += pf(a, 14, 0, 64, 144, t0)
    a(f"s_lshl_b32 s{sT0}, s{sMT}, 8")
    a(f"s_lshl_b32 s{sT1}, s{sCW}, 3")
    a(f"s_add_u32 s{sT0}, s{sT0}, s{sT1}")
    a(f"s_lshl_b32 s{sT1}, s{LW}, 1")
    a(f"s_add_u32 s{sT2}, s{sT0}, s{sT1}")
    a(f"v_add_u32 v{g_}, s{sT2}, v{hf_}")
    a(f"v_lshlrev_b32 v{t0}, 11, v{g_}")
    a(f"v_and_b32 v{t1}, 31, v0")
    a(f"v_lshl_add_u32 v{t0}, v{t1}, 4, v{t0}")
    for i in range(4):
        a(f"buffer_load_dwordx4 v[{vX+4*i}:{vX+4*i+3}], v{t0}, s[{SX}:{SX+3}], 0 offen offset:{i*512}")
    a(f"s_mul_i32 s{sT0}, s2, {FLS}")
    a(f"s_add_u32 s{sT0}, s{sT0}, {FL_OFF}")
    a(f"v_lshlrev_b32 v{t0}, 2, v0")
    a(f"v_mov_b32 v147, 0")
    a(f"buffer_store_dword v147, v{t0}, s[{SW}:{SW+3}], s{sT0} offen sc1")
    nb_ += 5
    a(f"s_waitcnt vmcnt({13 + nb_}) lgkmcnt(0)")
    a("s_barrier")
    cs_read()
    issue(cs_add(True))
    a(f"s_waitcnt vmcnt({13 + nb_}) lgkmcnt(0)")
    a("s_barrier")
    a(f"s_mov_b32 s{sPH}, 2")
    a.label(f"{name}_ld_loop")
    cs_read()
    a(f"s_cmp_lt_u32 s{sPH}, 14")
    a(f"s_cbranch_scc0 {name}_ld_noiss")
    a(f"s_cmp_lt_u32 s{sPH}, 13")
    a(f"s_cbranch_scc1 {name}_ld_sp")
    a.label(f"{name}_ld_spret")
    issue(cs_add(True))
    a(f"s_cmp_eq_u32 s{sPH}, 3")
    a(f"s_cbranch_scc1 {name}_ld_rs")
    a.label(f"{name}_ld_rsret")
    a("s_waitcnt vmcnt(13) lgkmcnt(0)")
    a("s_barrier")
    a(f"s_add_u32 s{sPH}, s{sPH}, 1")
    a(f"s_branch {name}_ld_loop")
    a.label(f"{name}_ld_noiss")
    cs_add()
    a(f"s_cmp_eq_u32 s{sPH}, 15")
    a(f"s_cbranch_scc1 {name}_ld_fin")
    a("s_waitcnt vmcnt(0)")
    a("s_barrier")
    a(f"s_add_u32 s{sPH}, s{sPH}, 1")
    a(f"s_branch {name}_ld_loop")
    a.label(f"{name}_ld_fin")
    a(f"v_add_f32 v{vCA}, v{vCA}, v{vCA+1}")
    a(f"v_add_f32 v{vCA+2}, v{vCA+2}, v{vCA+3}")
    a(f"v_mov_b32 v{vCA+1}, v{vCA}")
    a(f"v_mov_b32 v{vCA+3}, v{vCA+2}")
    a(f"v_and_b32 v{t1}, 31, v0")
    a(f"s_lshl_b32 s{sT0}, s{LW}, 7")
    a(f"v_permlane32_swap_b32 v{vCA}, v{vCA+1}")
    a(f"v_permlane32_swap_b32 v{vCA+2}, v{vCA+3}")
    a(f"s_add_u32 s{sT0}, s{sT0}, {LDS_M}")
    a(f"v_lshlrev_b32 v{t1}, 2, v{t1}")
    a(f"v_add_u32 v{t1}, s{sT0}, v{t1}")
    a(f"v_add_f32 v{vCA}, v{vCA}, v{vCA+1}")
    a(f"v_add_f32 v{vCA+2}, v{vCA+2}, v{vCA+3}")
    a(f"ds_write_b32 v{t1}, v{vCA}")
    a(f"ds_write_b32 v{t1}, v{vCA+2} offset:512")
    a(f"v_mov_b32 v{t0}, 0")
    a(f"ds_write_b32 v{t1}, v{t0} offset:2048")
    a("s_waitcnt lgkmcnt(0)")
    a("s_barrier")
    if 'pfk2' in EXP:
        pf(a, 6, 0, 7168, 144, t0)
        pf(a, 4, 0, 2048, 144, t0)
    if FUSED:
        a(f"s_branch {name}_att")
    else:
        ST.flush(a, 5, SW, sWAVE, ST_OFF)
        a("s_endpgm")

    a.label(f"{name}_ld_sp")
    a(f"s_cmp_eq_u32 s{LW}, 0")
    a(f"s_cbranch_scc0 {name}_ld_spret")
    a(f"s_cmp_eq_u32 s{sPH}, 5")
    a(f"s_cbranch_scc0 {name}_ld_n4")
    a(f"s_and_b32 s{sT0}, s2, 3")
    a(f"s_lshl_b32 s{sT0}, s{sT0}, 3")
    a(f"s_lshl_b32 s{sT0}, 1, s{sT0}")
    a(f"s_and_b32 s{sT1}, s2, 0xfc")
    a(f"v_mov_b32 v{vP}, s{sT0}")
    a(f"v_lshlrev_b32 v{vP+1}, 8, v0")
    a(f"buffer_atomic_add v{vP}, v{vP+1}, s[{SD}:{SD+3}], s{sT1} offen sc1")
    a(f"s_lshl_b32 s{sT0}, s{sCBM}, 6")
    a(f"s_lshl_b32 s{sT1}, s{sCBS}, 6")
    a(f"s_sub_u32 s{sT1}, s{sT1}, 256")
    a(f"v_mov_b32 v{t1}, s{sT0}")
    a(f"v_mov_b32 v{t2}, s{sT1}")
    a(f"v_cmp_gt_u32 vcc, 32, v0")
    a("s_nop 1")
    a(f"v_cndmask_b32 v{t1}, v{t2}, v{t1}, vcc")
    a(f"v_lshl_add_u32 v{t1}, v0, 3, v{t1}")
    a(f"buffer_load_dwordx2 v[{vX}:{vX+1}], v{t1}, s[{SB1}:{SB1+3}], 0 offen")
    a(f"s_branch {name}_ld_spret")
    a.label(f"{name}_ld_n4")
    a(f"s_cmp_eq_u32 s{sPH}, 11")
    a(f"s_cbranch_scc0 {name}_ld_n10")
    a(f"v_lshlrev_b32 v{vP+1}, 2, v0")
    a(f"buffer_load_dword v{vP+2}, v{vP+1}, s[{SD}:{SD+3}], 0 offen sc1")
    a(f"v_lshlrev_b32 v{vX+4}, 16, v{vX}")
    a(f"v_and_b32 v{vX+5}, 0xffff0000, v{vX}")
    a(f"v_lshlrev_b32 v{vX+6}, 16, v{vX+1}")
    a(f"v_and_b32 v{vX+7}, 0xffff0000, v{vX+1}")
    a(f"v_lshlrev_b32 v{t0}, 4, v0")
    a(f"v_add_u32 v{t0}, {LDS_M}, v{t0}")
    a(f"ds_write_b128 v{t0}, v[{vX+4}:{vX+7}] offset:1024")
    a(f"s_branch {name}_ld_spret")
    a.label(f"{name}_ld_n10")
    a(f"s_cmp_eq_u32 s{sPH}, 12")
    a(f"s_cbranch_scc0 {name}_ld_spret")
    a(f"s_mov_b32 s{sT2}, 0")
    a.label(f"{name}_ld_poll")
    a(f"v_and_b32 v{vP+2}, 0x01010101, v{vP+2}")
    a(f"v_cmp_ne_u32 vcc, 0x01010101, v{vP+2}")
    a("s_nop 1")
    a(f"s_cbranch_vccz {name}_ld_spret")
    a("s_sleep 8")
    a(f"buffer_load_dword v{vP+2}, v{vP+1}, s[{SD}:{SD+3}], 0 offen sc1")
    a("s_waitcnt vmcnt(0)")
    a(f"s_add_u32 s{sT2}, s{sT2}, 1")
    a(f"s_cmp_lt_u32 s{sT2}, 20000")
    a(f"s_cbranch_scc1 {name}_ld_poll")
    a(f"s_branch {name}_ld_spret")

    a.label(f"{name}_ld_rs")
    vF = 104
    for i in range(16):
        a(f"v_lshlrev_b32 v{vF+2*i}, 16, v{vX+i}")
        a(f"v_and_b32 v{vF+2*i+1}, 0xffff0000, v{vX+i}")
    def reduce32(acc):
        for sh in (1, 2, 4, 8):
            a("s_nop 1")
            a(f"v_add_f32_dpp v{acc}, v{acc}, v{acc} row_ror:{sh} row_mask:0xf bank_mask:0xf")
        a(f"v_mov_b32 v{t3}, v{acc}")
        a("s_nop 1")
        a(f"v_permlane16_swap_b32 v{acc}, v{t3}")
        a("s_nop 1")
        a(f"v_add_f32 v{acc}, v{acc}, v{t3}")
    s0, s1 = 136, 137
    a(f"v_add_f32 v{s0}, v{vF}, v{vF+1}")
    a(f"v_add_f32 v{s1}, v{vF+2}, v{vF+3}")
    for i in range(4, 32, 2):
        a(f"v_add_f32 v{s0}, v{s0}, v{vF+i}")
        a(f"v_add_f32 v{s1}, v{s1}, v{vF+i+1}")
    a(f"v_add_f32 v{s0}, v{s0}, v{s1}")
    reduce32(s0)
    mean = 138
    a(f"v_mul_f32 v{mean}, {f32(1.0/1024)}, v{s0}")
    for i in range(32):
        a(f"v_sub_f32 v{vF+i}, v{vF+i}, v{mean}")
    a(f"v_mul_f32 v{s0}, v{vF}, v{vF}")
    a(f"v_mul_f32 v{s1}, v{vF+1}, v{vF+1}")
    for i in range(2, 32, 2):
        a(f"v_fmac_f32 v{s0}, v{vF+i}, v{vF+i}")
        a(f"v_fmac_f32 v{s1}, v{vF+i+1}, v{vF+i+1}")
    a(f"v_add_f32 v{s0}, v{s0}, v{s1}")
    reduce32(s0)
    var, mb, r_v, rs_v = 139, 140, 141, 142
    def rbf(r):
        a(f"v_cvt_pk_bf16_f32 v{r}, v{r}, v{r}")
        a(f"v_and_b32 v{r}, 0xffff0000, v{r}")
    a(f"v_mul_f32 v{var}, {f32(1.0/1024)}, v{s0}")
    a(f"v_mov_b32 v{mb}, v{mean}")
    rbf(mb)
    a(f"v_mov_b32 v{t0}, v{var}")
    rbf(t0)
    a(f"v_add_f32 v{t0}, {f32(1e-5)}, v{t0}")
    rbf(t0)
    a(f"v_sqrt_f32 v{t0}, v{t0}")
    a("s_nop 0")
    rbf(t0)
    a(f"v_rcp_f32 v{r_v}, v{t0}")
    a("s_nop 0")
    a(f"v_mul_f32 v{t1}, v{r_v}, v{r_v}")
    a(f"v_mul_f32 v{t1}, v{t1}, v{var}")
    rbf(t1)
    a(f"v_add_f32 v{t1}, {f32(1e-5)}, v{t1}")
    rbf(t1)
    a(f"v_sqrt_f32 v{t1}, v{t1}")
    a("s_nop 0")
    rbf(t1)
    a(f"v_rcp_f32 v{t1}, v{t1}")
    a("s_nop 0")
    a(f"v_mul_f32 v{rs_v}, v{r_v}, v{t1}")
    a(f"v_mul_f32 v{mb}, v{mb}, v{r_v}")
    a(f"v_sub_f32 v{mb}, 0, v{mb}")
    a(f"v_mul_f32 v{mean}, v{mean}, v{rs_v}")
    a(f"v_sub_f32 v{mean}, 0, v{mean}")
    a(f"v_and_b32 v{t0}, 31, v0")
    a(f"v_cmp_eq_u32 vcc, 1, v{t0}")
    a("s_nop 1")
    a(f"v_cndmask_b32 v{r_v}, v{r_v}, v{mb}, vcc")
    a(f"v_cmp_eq_u32 vcc, 2, v{t0}")
    a("s_nop 1")
    a(f"v_cndmask_b32 v{r_v}, v{r_v}, v{rs_v}, vcc")
    a(f"v_cmp_eq_u32 vcc, 3, v{t0}")
    a("s_nop 1")
    a(f"v_cndmask_b32 v{r_v}, v{r_v}, v{mean}, vcc")
    a(f"v_lshlrev_b32 v{t1}, 13, v{t0}")
    a(f"v_lshl_add_u32 v{t1}, v{g_}, 2, v{t1}")
    a(f"v_add_u32 v{t1}, {RS_OFF}, v{t1}")
    a(f"v_mov_b32 v{t2}, 0x7fffff00")
    a(f"v_cmp_gt_u32 vcc, 4, v{t0}")
    a("s_nop 1")
    a(f"v_cndmask_b32 v{t1}, v{t2}, v{t1}, vcc")
    a(f"buffer_store_dword v{r_v}, v{t1}, s[{SW}:{SW+3}], 0 offen sc1")
    a(f"s_branch {name}_ld_rsret")

ACC = 96
vAA = 2
vBA = 6
vSA = 8
vBF = 12
vAF = 32

TOP = None
def gen_compute(a, name, stflag):
    global TOP
    TOP = name
    t0, t1, t2, t3 = 48, 49, 50, 51
    W = sWAVE
    a(f"v_and_b32 v{t0}, 31, v0")
    a(f"v_lshrrev_b32 v{t1}, 5, v0")
    a(f"v_bfe_u32 v{t2}, v0, 1, 3")
    a(f"v_xor_b32 v{t2}, v{t2}, v{t1}")
    a(f"v_lshlrev_b32 v{t2}, 4, v{t2}")
    a(f"v_lshl_add_u32 v{t2}, v{t0}, 7, v{t2}")
    a(f"s_mul_i32 s{sT0}, s{W}, 24576")
    for st in range(4):
        a(f"v_xor_b32 v{vAA+st}, {st*32}, v{t2}")
        a(f"v_add_u32 v{vAA+st}, s{sT0}, v{vAA+st}")
    a(f"v_bfe_u32 v{t0}, v0, 4, 1")
    a(f"v_and_b32 v{t2}, 3, v0")
    a(f"v_lshlrev_b32 v{t0}, 5, v{t0}")
    a(f"v_lshl_add_u32 v{t0}, v{t2}, 3, v{t0}")
    a(f"v_bfe_u32 v{t2}, v0, 2, 2")
    a(f"v_lshl_add_u32 v{t1}, v{t1}, 3, v{t2}")
    a(f"v_bfe_u32 v{t3}, v0, 3, 1")
    a(f"v_lshlrev_b32 v{t3}, 6, v{t3}")
    a(f"v_xor_b32 v{t3}, v{t3}, v{t0}")
    a(f"v_lshl_add_u32 v{t3}, v{t1}, 7, v{t3}")
    a(f"v_add_u32 v{vBA}, {LDS_B}, v{t3}")
    a(f"v_xor_b32 v{vBA+1}, 64, v{vBA}")
    a(f"v_lshl_add_u32 v{t3}, v{t1}, 6, v{t0}")
    a(f"v_add_u32 v{vSA}, {LDS_B}, v{t3}")
    a(f"s_getpc_b64 s[72:73]")
    a.label(f"{name}_pc")
    a(f"s_sub_u32 s72, s72, {name}_pc-code_begin")
    a(f"s_subb_u32 s73, s73, 0")
    a(f"s_lshr_b32 s{sT0}, s2, 3")
    a(f"s_and_b32 s{sT0}, s{sT0}, 7")
    a(f"s_lshl_b32 s{sT0}, s{sT0}, 2")
    a(f"s_add_u32 s{sT0}, s{sT0}, s{W}")
    a(f"s_lshl_b32 s{sT0}, s{sT0}, 11")
    a(f"v_and_b32 v{t0}, 31, v0")
    a(f"v_lshlrev_b32 v{t0}, 6, v{t0}")
    a(f"v_add_u32 v{t0}, s{sT0}, v{t0}")
    a(f"v_min_u32 v11, code_end-code_begin-4, v{t0}")
    a(f"global_load_dword v{t1}, v11, s[72:73]")
    for r in range(ACC, 256):
        a(f"v_mov_b32 v{r}, 0")
    a(f"s_cmp_eq_u32 s{sTYPE}, 1")
    a(f"s_cbranch_scc1 {name}_cq")
    a(f"s_cmp_eq_u32 s{sTYPE}, 2")
    a(f"s_cbranch_scc1 {name}_ckv")
    H9 = [("H", "m0", 0, [0, 1]), ("H", "m1", 0, [0, 1]), ("H", "m0", 8192, [0, 1]), ("H", "m1", 8192, [0, 1]), ("H", "s", 16384, [0])]
    Q5 = [("Q", "m0", 0, [0, 1]), ("Q", "m1", 0, [0, 1]), ("Q", "m0", 8192, [0, 1]), ("Q", "m1", 8192, [0, 1]), ("Q", "s", 16384, [0, 1])]
    QKV = [("Q", "m0", 0, [0, 1]), ("Q", "m1", 0, [0, 1]), ("V", "s", 8192, [0, 1]), None, ("K", "s", 16384, [0, 1])]
    gen_variant(a, name + "_h", H9, stflag)
    a.label(f"{name}_cq")
    gen_variant(a, name + "_q", Q5, stflag)
    a.label(f"{name}_ckv")
    gen_variant(a, name + "_kv", QKV, stflag)

def pf(a, ptr, base, nbytes, dst, va=48):
    G = 128 if 'g128' in EXP else 64
    a(f"s_mul_i32 s{sT0}, s{sWI}, {nbytes}")
    if base: a(f"s_add_u32 s{sT0}, s{sT0}, {base}")
    n = 0
    for o in range(0, nbytes, 64 * G):
        a(f"v_lshlrev_b32 v{va}, {7 if G == 128 else 6}, v0")
        if o: a(f"v_add_u32 v{va}, {o}, v{va}")
        a(f"v_min_u32 v{va}, {nbytes - 64}, v{va}")
        a(f"v_add_u32 v{va}, s{sT0}, v{va}")
        a(f"global_load_dword v{dst}, v{va}, s[{ptr}:{ptr+1}]")
        n += 1
    return n

def acc(nb, ps):
    return ACC + (nb * 2 + ps) * 16

def gen_variant(a, name, spec, stflag):
    blocks = [nb for nb in range(5) if spec[nb] is not None]
    mf = [(nb, ps) for nb in blocks for ps in spec[nb][3]]

    def rdB(nb, slot, st):
        kind, fmt, off, _ = spec[nb]
        o = []
        for j in range(2):
            if fmt == "s":
                o.append((f"ds_read_b64_tr_b16 v[{vBF+4*nb+2*j}:{vBF+4*nb+2*j+1}], v{vSA} offset:{slot*SLOT_B + off + st*1024 + j*256}", ("B", nb, j)))
            else:
                o.append((f"ds_read_b64_tr_b16 v[{vBF+4*nb+2*j}:{vBF+4*nb+2*j+1}], v{vBA + int(fmt[1])} offset:{slot*SLOT_B + off + st*2048 + j*512}", ("B", nb, j)))
        return o
    def rdA(slot, st):
        buf = st % 2
        return [(f"ds_read_b128 v[{vAF+buf*8+ps*4}:{vAF+buf*8+ps*4+3}], v{vAA+st} offset:{slot*8192 + ps*4096}", ("A", buf, ps)) for ps in range(2)]

    def tile(out, q, slot, last, extra=None):
        for st in range(4):
            nslot, nst = (slot, st + 1) if st < 3 else ((slot + 1) % 3, 0)
            nxt = not (last and st == 3)
            pend = []
            if nxt:
                pend += rdA(nslot, nst)
            hold = BAR_AT if st == 3 else 0
            for mi, (nb, ps) in enumerate(mf):
                tags = []
                for (nb2, ps2) in mf[mi:mi + 2]:
                    tags += [("B", nb2, 0), ("B", nb2, 1), ("A", st % 2, ps2)]
                own = [("B", nb, 0), ("B", nb, 1), ("A", st % 2, ps)]
                probe = Q("p", 15); probe.issued = list(q.issued); probe.done = q.done
                if probe.need(own) is not None:
                    n = q.need(tags)
                    out.append(f"s_waitcnt lgkmcnt({n})")
                A_ = v(vAF + (st % 2) * 8 + ps * 4, 4)
                B_ = v(vBF + 4 * nb, 4)
                c = v(acc(nb, ps), 16)
                if spec[nb][0] == "V":
                    out.append(f"v_mfma_f32_32x32x16_bf16 {c}, {A_}, {B_}, {c}")
                else:
                    out.append(f"v_mfma_f32_32x32x16_bf16 {c}, {B_}, {A_}, {c}")
                if nxt and (mi + 1 == len(mf) or mf[mi + 1][0] != nb):
                    pend += rdB(nb, nslot, nst)
                if st == 3 and nxt and mi + 1 == hold:
                    out.append("s_waitcnt lgkmcnt(0)")
                    q.drain()
                    out.append("s_barrier")
                if mi + 1 >= hold:
                    k = 0
                    while pend and k < 3:
                        ins, tag = pend.pop(0)
                        out.append(ins); q.issue(tag); k += 1
                if extra and (st, mi) in extra:
                    out += extra[(st, mi)]
            assert not pend, pend

    BAR_AT = BARAT
    a("s_barrier")
    ST.mark(a, 1)
    q = Q("lgkm", 15)
    for ins, tag in rdA(0, 0) + sum((rdB(nb, 0, 0) for nb in blocks), []):
        a(ins)
    a("s_waitcnt lgkmcnt(0)")
    dummy = []
    tile(dummy, q, 2, False)
    body = []
    for slot in range(3):
        tile(body, q, slot, False)
    a(f"s_mov_b32 s{sPH}, 5")
    a(".p2align 6")
    a.label(f"{name}_loop")
    for ln in body: a(ln)
    a(f"s_sub_u32 s{sPH}, s{sPH}, 1")
    a(f"s_cmp_lg_u32 s{sPH}, 0")
    a(f"s_cbranch_scc1 {name}_loop")
    if not FUSED: ST.mark(a, 2)
    isH = spec[0][0] == "H"
    hasV = any(sp and sp[0] == "V" for sp in spec)
    vR = 52
    vO = 60
    vRow = 62
    pre = []
    pre.append(f"s_lshl_b32 s{sT0}, s{sMT}, 8")
    pre.append(f"s_lshl_b32 s{sT1}, s{sWAVE}, 6")
    pre.append(f"s_add_u32 s{sT0}, s{sT0}, s{sT1}")
    pre.append(f"s_lshl_b32 s{sT0}, s{sT0}, 2")
    pre.append(f"s_add_u32 s{sT0}, s{sT0}, {RS_OFF + (16384 if isH else 0)}")
    pre.append(f"s_add_u32 s{sT1}, s{sT0}, 8192")
    pre.append(f"s_lshl_b32 s{sT2}, s{sFLIP}, 7")
    pre.append(f"v_and_b32 v{vRow}, 31, v0")
    pre.append(f"v_lshlrev_b32 v{vRow}, 2, v{vRow}")
    pre.append(f"v_add_u32 v{vRow}, s{sT2}, v{vRow}")
    pre.append(f"v_xor_b32 v{vRow+1}, 0x80, v{vRow}")
    pre2 = []
    for ps in range(2):
        pre2.append(f"buffer_load_dword v{vR+4*ps}, v{vRow+ps}, s[{SW}:{SW+3}], s{sT0} offen sc1")
        pre2.append(f"buffer_load_dword v{vR+4*ps+2}, v{vRow+ps}, s[{SW}:{SW+3}], s{sT1} offen sc1")
    extra = {(0, 0): pre[:4], (0, 1): pre[4:8], (0, 2): pre[8:], (0, 3): pre2[:1], (0, 5): pre2[1:2], (1, 1): pre2[2:3], (1, 3): pre2[3:], (1, 5): ["global_load_dword v10, v11, s[72:73]"]}
    vVS = acc(3, 0)
    if hasV:
        vs = [f"v_lshrrev_b32 v9, 5, v0", f"v_lshlrev_b32 v9, 4, v9"]
        for ps in range(2):
            dst = vVS if ps == 0 else 64
            for g in range(4):
                vs.append(f"buffer_load_dwordx4 v[{dst+4*g}:{dst+4*g+3}], v9, s[{SW}:{SW+3}], s{sT0} offen offset:{ps*128 + g*32} sc1")
                vs.append(f"buffer_load_dwordx4 v[{dst+16+4*g}:{dst+16+4*g+3}], v9, s[{SW}:{SW+3}], s{sT1} offen offset:{ps*128 + g*32} sc1")
        extra[(1, 6)] = vs[:2]
        k = 2
        for st_ in (2, 3):
            for mi in range(8):
                extra[(st_, mi)] = vs[k:k + 1]; k += 1
    last = []
    tile(last, q, 0, True, extra)
    for ln in last: a(ln)

    ST.mark(a, 2 if FUSED else 3)
    a(f"s_and_b32 s{sT0}, s{sWAVE}, 1")
    a(f"s_lshl_b32 s{sT0}, s{sT0}, 1")
    a(f"s_add_u32 s{sT0}, s{sT0}, s{sFLIP}")
    a(f"s_lshl_b32 s{sT0}, s{sT0}, 10")
    a(f"v_lshlrev_b32 v{vO}, 4, v0")
    a(f"v_add_u32 v{vO}, s{sT0}, v{vO}")
    a(f"v_xor_b32 v{vO+1}, 0x400, v{vO}")
    a(f"s_lshr_b32 s{sT0}, s{sWAVE}, 1")
    a(f"s_lshl_b32 s{sT1}, s{sMT}, 1")
    a(f"s_add_u32 s{sT0}, s{sT0}, s{sT1}")
    if isH:
        a(f"s_mul_i32 s{sT3}, s{sT0}, {A2_MT}")
        a(f"s_add_u32 s{sT3}, s{sT3}, {A2_OFF + 64*4096}")
    else:
        a(f"s_mul_i32 s{sT3}, s{sT0}, {QF_MT}")
        a(f"s_add_u32 s{sT3}, s{sT3}, {QF_OFF}")
    a(f"s_lshl_b32 s{sT1}, s{sCBM}, 13")
    a(f"s_add_u32 s{sOA}, s{sT3}, s{sT1}")
    a(f"s_lshl_b32 s{sT1}, s{sCBS}, 13")
    a(f"s_add_u32 s{sOB}, s{sT3}, s{sT1}")
    vT = 63
    a(f"v_lshrrev_b32 v{vT}, 5, v0")
    a(f"v_lshlrev_b32 v{vT}, 4, v{vT}")
    a(f"v_add_u32 v{vT}, {LDS_M}, v{vT}")
    vCS = [12, 64]
    vBI = [28, 80]
    vK0, vK1 = 44, 46
    vTMP = 2
    def rdtab(nb, buf):
        for g in range(4):
            a(f"ds_read_b128 v[{vCS[buf]+4*g}:{vCS[buf]+4*g+3}], v{vT} offset:{nb*128 + g*32}")
        if isH:
            for g in range(4):
                a(f"ds_read_b128 v[{vBI[buf]+4*g}:{vBI[buf]+4*g+3}], v{vT} offset:{1024 + nb*128 + g*32}")
    nrd = 8 if isH else 4
    order = [nb for nb in blocks if spec[nb][0] != "V"]
    if hasV: order = [4, 0, 1]
    a("s_barrier")
    if FUSED: a("s_setprio 3")
    rdtab(order[0], 0)
    a(f"v_mov_b32 v{vK0}, {f32(G_C0)}")
    a(f"v_mov_b32 v{vK1}, {f32(G_C1)}")
    a(f"s_waitcnt vmcnt({17 if hasV else 1})")
    if not isH:
        for ps in range(2):
            a(f"v_mul_f32 v{vR+4*ps+1}, {f32(QSCALE)}, v{vR+4*ps}")
            a(f"v_mul_f32 v{vR+4*ps+3}, {f32(QSCALE)}, v{vR+4*ps+2}")
    def P(r): return v(r, 2)
    a("s_nop 7")
    if hasV:
        nb = 2
        a(f"v_and_b32 v2, 31, v0")
        a(f"v_lshlrev_b32 v2, 2, v2")
        a(f"v_add_u32 v2, {LDS_M + 256}, v2")
        a(f"ds_read_b32 v4, v2")
        a("s_waitcnt vmcnt(0) lgkmcnt(0)")
        for ps in range(2):
            src = vVS if ps == 0 else 64
            c = acc(nb, ps)
            for e in range(0, 16, 2):
                a(f"v_pk_mul_f32 {P(c+e)}, {P(c+e)}, {P(src+e)}")
            for e in range(0, 16, 2):
                a(f"v_pk_fma_f32 {P(c+e)}, {P(src+16+e)}, {P(4)}, {P(c+e)} op_sel:[0,0,0] op_sel_hi:[1,0,1]")
            for half in range(2):
                for i in range(4):
                    e = half * 8 + 2 * i
                    a(f"v_cvt_pk_bf16_f32 v{c+half*8+i}, v{c+e}, v{c+e+1}")
                emit_store(a, spec, nb, ps, half, c + half * 8, vO, stflag)
    deferred = []
    for bi, nb in enumerate(order):
        buf = bi % 2
        if bi + 1 < len(order) and nb != 4:
            rdtab(order[bi + 1], 1 - buf)
            a(f"s_waitcnt lgkmcnt({nrd})")
        else:
            a("s_waitcnt lgkmcnt(0)")
        kind = spec[nb][0]
        if nb == 4:
            ob = 1 - buf
            for p in range(1, 4):
                for g in range(4):
                    a(f"ds_read_b128 v[{vCS[ob]+4*g}:{vCS[ob]+4*g+3}], v{vT} offset:{(4+p)*128 + g*32}")
                a("s_waitcnt lgkmcnt(0)")
                for e in range(0, 16, 2):
                    a(f"v_pk_add_f32 {P(vCS[buf]+e)}, {P(vCS[buf]+e)}, {P(vCS[ob]+e)}")
            if bi + 1 < len(order):
                rdtab(order[bi + 1], 1 - buf)
        if isH and nb == 4:
            a(f"s_cmp_eq_u32 s{sCW}, 31")
            a(f"s_cbranch_scc1 {name}_end")
        for ps in spec[nb][3]:
            c = acc(nb, ps)
            sel = 1 if kind == "Q" else 0
            sc_ = f"op_sel:[0,{sel},0] op_sel_hi:[1,{sel},1]"
            if kind == "H":
                for half in range(2):
                    T = [2, 4, 6, 8]
                    idx = [half * 8 + 2 * i for i in range(4)]
                    for i, e in enumerate(idx):
                        a(f"v_pk_fma_f32 {P(T[i])}, {P(vCS[buf]+e)}, {P(vR+4*ps+2)}, {P(vBI[buf]+e)} {sc_}")
                    for i, e in enumerate(idx):
                        a(f"v_pk_fma_f32 {P(c+e)}, {P(c+e)}, {P(vR+4*ps)}, {P(T[i])} {sc_}")
                    for i, e in enumerate(idx):
                        a(f"v_pk_mul_f32 {P(T[i])}, {P(c+e)}, {P(c+e)}")
                    for i, e in enumerate(idx):
                        a(f"v_pk_fma_f32 {P(T[i])}, {P(T[i])}, {P(vK1)}, {P(vK0)} op_sel:[0,0,0] op_sel_hi:[1,0,0]")
                    for i, e in enumerate(idx):
                        a(f"v_pk_mul_f32 {P(T[i])}, {P(T[i])}, {P(c+e)}")
                    for i in range(8):
                        a(f"v_exp_f32 v{2+i}, v{2+i}")
                    for i, e in enumerate(idx):
                        a(f"v_pk_add_f32 {P(T[i])}, {P(T[i])}, 1.0 op_sel_hi:[1,0]")
                    for i in range(8):
                        a(f"v_rcp_f32 v{2+i}, v{2+i}")
                    for i, e in enumerate(idx):
                        a(f"v_pk_mul_f32 {P(c+e)}, {P(c+e)}, {P(T[i])}")
                    for i, e in enumerate(idx):
                        a(f"v_cvt_pk_bf16_f32 v{c+half*8+i}, v{c+e}, v{c+e+1}")
                    deferred.append((nb, ps, half, c + half * 8))
                    if nb == 4:
                        emit_store(a, spec, *deferred.pop(), vO, stflag)
                    elif nb >= DEFER:
                        for _ in range(3):
                            if deferred: emit_store(a, spec, *deferred.pop(0), vO, stflag)
            else:
                for e in range(0, 16, 2):
                    a(f"v_pk_mul_f32 {P(c+e)}, {P(c+e)}, {P(vR+4*ps)} op_sel:[0,{sel}] op_sel_hi:[1,{sel}]")
                for e in range(0, 16, 2):
                    a(f"v_pk_fma_f32 {P(c+e)}, {P(vCS[buf]+e)}, {P(vR+4*ps+2)}, {P(c+e)} {sc_}")
                for half in range(2):
                    for i in range(4):
                        e = half * 8 + 2 * i
                        a(f"v_cvt_pk_bf16_f32 v{c+half*8+i}, v{c+e}, v{c+e+1}")
                    emit_store(a, spec, nb, ps, half, c + half * 8, vO, stflag)
    a.label(f"{name}_end")
    for (nb, ps, half, reg) in deferred:
        emit_store(a, spec, nb, ps, half, reg, vO, stflag)
    if FUSED:
        a(f"s_lshr_b32 s{sT0}, s{sWAVE}, 1")
        a(f"s_lshl_b32 s{sT1}, s{sMT}, 1")
        a(f"s_add_u32 s{sT0}, s{sT0}, s{sT1}")
        if isH:
            a(f"s_lshl_b32 s{sT0}, s{sT0}, 2")
            a(f"s_and_b32 s{sT1}, s{sCW}, 3")
            a(f"s_add_u32 s{sT0}, s{sT0}, s{sT1}")
            a(f"s_mul_i32 s{sT3}, s{sT0}, {FLS}")
            a(f"s_add_u32 s{sT3}, s{sT3}, {FL_OFF + FL_H*FLS}")
            a("v_mov_b32 v2, 1")
            a("v_lshlrev_b32 v3, 24, v0")
        else:
            if hasV:
                a(f"s_mov_b32 s{sT3}, {FL_OFF + FL_A*FLS}")
                a("v_mov_b32 v4, 0x10000")
                a(f"v_mul_u32_u24 v3, {FLS}, v0")
                a("v_lshrrev_b32 v5, 4, v0")
                a("v_lshl_add_u32 v5, v5, 24, v3")
                a("s_waitcnt vmcnt(8)")
                a(f"buffer_atomic_add v4, v5, s[{SW}:{SW+3}], s{sT3} offen sc1")
            a(f"s_mul_i32 s{sT3}, s{sT0}, {FLS}")
            a(f"s_add_u32 s{sT3}, s{sT3}, {FL_OFF + FL_A*FLS}")
            a("v_mov_b32 v2, 1")
            a("v_lshlrev_b32 v3, 24, v0")
        if ST.on: ST.mark(a, 3)
        a(f"s_waitcnt vmcnt({1 if hasV else 0})")
        a(f"buffer_atomic_add v2, v3, s[{SW}:{SW+3}], s{sT3} offen sc1")
        a(f"s_branch {TOP}_g2")
    else:
        ST.mark(a, 4)
        ST.flush(a, 5, SW, sWAVE, ST_OFF)
        a("s_endpgm")

def emit_store(a, spec, nb, ps, half, reg, vO, stflag):
    kind = spec[nb][0]
    if kind in ("H", "Q"):
        base = sOB if nb == 4 else sOA
        off = (0 if nb == 4 else nb * 8192) + half * 4096
        a(f"s_add_u32 s{sT0}, s{base}, {off}")
        a(f"buffer_store_dwordx4 v[{reg}:{reg+3}], v{vO+ps}, s[{SW}:{SW+3}], s{sT0} offen {stflag}")
    else:
        a(f"s_lshl_b32 s{sT0}, s{sMT}, 3")
        a(f"s_lshl_b32 s{sT1}, s{sWAVE}, 1")
        a(f"s_add_u32 s{sT0}, s{sT0}, s{sT1}")
        a(f"s_lshl_b32 s{sT0}, s{sT0}, 12")
        a(f"s_add_u32 s{sT0}, s{sT0}, {KV_OFF + ps*4096 + (2048 if kind == 'V' else 0) + half*1024}")
        a(f"v_lshlrev_b32 v8, 4, v0")
        a(f"buffer_store_dwordx4 v[{reg}:{reg+3}], v8, s[{SW}:{SW+3}], s{sT0} offen {stflag}")
```

```python
import math, os
from asmlib import *
from layout import *
import k2
EXP = os.environ.get('EXP', '')

LDS_KV = 0
LDS_GB = 65536
LDS_PROG = k2.LDS_M + 2048
RED_STRIDE = 272
RED_PART = 128 * RED_STRIDE
D = 6

SX, SW, sWAVE = k2.SX, k2.SW, k2.sWAVE
SWC, SKV, SB2, SO = 28, 32, 40, 44
sMT, sNT, sAMT, sAH = 48, 49, 50, 51
sT0, sT1, sT2, sT3 = 57, 58, 59, 60
sIT, sKVO, sM0, sQO, sOO, sSPIN, sHS, sAW = 63, 64, 65, 66, 67, 68, 69, 70
sMODE, sRDY, sDONE, sRET = 71, 52, 53, 74
MF = "v_mfma_f32_32x32x16_bf16"

def srd(a, base, ptr, size):
    a(f"s_mov_b32 s{base}, s{ptr}")
    a(f"s_mov_b32 s{base+1}, s{ptr+1}")
    a(f"s_mov_b32 s{base+2}, {size}")
    a(f"s_mov_b32 s{base+3}, 0x20000")

def common(a):
    a(f"s_and_b32 s{sT0}, s2, 7")
    a(f"s_lshr_b32 s{sT1}, s2, 3")
    a(f"s_and_b32 s{sMT}, s{sT0}, 3")
    a(f"s_lshl_b32 s{sMT}, s{sMT}, 2")
    a(f"s_and_b32 s{sT2}, s{sT1}, 3")
    a(f"s_add_u32 s{sMT}, s{sMT}, s{sT2}")
    a(f"s_lshr_b32 s{sNT}, s{sT0}, 2")
    a(f"s_lshl_b32 s{sNT}, s{sNT}, 3")
    a(f"s_lshr_b32 s{sT2}, s{sT1}, 2")
    a(f"s_add_u32 s{sNT}, s{sNT}, s{sT2}")
    srd(a, SB2, 96, 2048)
    srd(a, SO, 98, 4194304)

def phase2(a, name, ST):
    a.label(f"{name}_att")
    gen_att(a, name, ST)
    a(f"s_branch {name}_final")
    a.label(f"{name}_g2")
    gen_gemm(a, name, ST)
    a.label(f"{name}_final")
    gen_final(a, name, ST)

def gen_att(a, name, ST):
    NQ = 2
    vL16 = 1
    vPA, vPR, vPV, vPG = 2, 3, 4, 5
    vIDX = 6
    vT0, vT1 = 8, 9
    SEL = 12
    F = [16, 32]
    P = 48
    S = [64, 80]
    Qf = [96, 104]
    LA = [112, 116]
    C = [128, 144]
    O = [160, 176]
    ST.mark(a, 2)
    if 'nopfo' not in EXP:
        a(f"s_cmp_lt_u32 s{k2.sCW}, 24")
        a(f"s_cbranch_scc0 {name}_nopf")
        a(f"s_mul_i32 s{sT0}, s{k2.sMT}, 24")
        a(f"s_add_u32 s{sT0}, s{sT0}, s{k2.sCW}")
        a(f"s_lshl_b32 s{sT0}, s{sT0}, 2")
        a(f"s_add_u32 s{sT0}, s{sT0}, s{sWAVE}")
        a(f"s_sub_u32 s{sT0}, s{sT0}, 4")
        srd(a, SWC, 6, 7340032)
        srd(a, SKV, 4, 2097152)
        a(f"s_mul_i32 s{sT1}, s{sT0}, 9600")
        a(f"s_mul_i32 s{sT2}, s{sT0}, 2752")
        a(f"v_min_u32 v{vT0}, 49, v0")
        a(f"v_lshlrev_b32 v{vT0}, 6, v{vT0}")
        a(f"v_min_u32 v{vT1}, 42, v0")
        a(f"v_lshlrev_b32 v{vT1}, 6, v{vT1}")
        if 'pfw' in EXP:
            a(f"buffer_load_dword v200, v{vT0}, s[{SWC}:{SWC+3}], s{sT1} offen")
            a(f"buffer_load_dword v200, v{vT0}, s[{SWC}:{SWC+3}], s{sT1} offen offset:3200")
            a(f"s_add_u32 s{sT1}, s{sT1}, 6400")
            a(f"buffer_load_dword v200, v{vT0}, s[{SWC}:{SWC+3}], s{sT1} offen")
        a(f"buffer_load_dword v200, v{vT1}, s[{SKV}:{SKV+3}], s{sT2} offen")
        a.label(f"{name}_nopf")
    common(a)
    a(f"s_sub_u32 s{sAW}, s{sWAVE}, 4")
    a(f"s_lshr_b32 s{sAMT}, s2, 4")
    a(f"s_and_b32 s{sAH}, s2, 15")
    a(f"s_add_u32 s{SKV}, s22, {KV_OFF}")
    a(f"s_addc_u32 s{SKV+1}, s23, 0")
    a(f"s_mov_b32 s{SKV+2}, {KV_SIZE}")
    a(f"s_mov_b32 s{SKV+3}, 0x20000")
    a(f"v_lshlrev_b32 v{vL16}, 4, v0")
    a(f"s_mul_i32 s{sQO}, s{sAMT}, {QF_MT}")
    a(f"s_lshl_b32 s{sT0}, s{sAH}, 14")
    a(f"s_lshl_b32 s{sT1}, s{sAW}, 10")
    a(f"s_add_u32 s{sT0}, s{sT0}, s{sT1}")
    a(f"s_add_u32 s{sQO}, s{sQO}, s{sT0}")
    a(f"s_add_u32 s{sQO}, s{sQO}, {QF_OFF}")
    a(f"s_mul_i32 s{sOO}, s{sAMT}, {A2_MT}")
    a(f"s_add_u32 s{sOO}, s{sOO}, s{sT0}")
    a(f"s_lshl_b32 s{sM0}, s{sAW}, 12")
    a(f"s_lshr_b32 s{sKVO}, s2, 3")
    a(f"s_and_b32 s{sKVO}, s{sKVO}, 15")
    a(f"s_lshl_b32 s{sKVO}, s{sKVO}, 14")
    a(f"s_add_u32 s{sKVO}, s{sKVO}, s{sM0}")
    def dma(slot):
        o = [f"s_add_u32 m0, s{sM0}, {LDS_KV + slot*16384}"]
        for i in range(4):
            o.append(f"buffer_load_dwordx4 v{vL16}, s[{SKV}:{SKV+3}], s{sKVO} offen offset:{i*1024} lds")
        o.append(f"s_add_u32 s{sKVO}, s{sKVO}, 16384")
        o.append(f"s_and_b32 s{sKVO}, s{sKVO}, {KV_SIZE-1}")
        return o
    a(f"s_lshl_b32 s{sT0}, s{sAW}, 7")
    a(f"s_add_u32 s{sT0}, s{sT0}, {LDS_PROG}")
    a(f"v_mov_b32 v{vPA}, s{sT0}")
    a(f"v_and_b32 v{vPR}, 3, v0")
    a(f"v_lshlrev_b32 v{vPR}, 7, v{vPR}")
    a(f"v_add_u32 v{vPR}, {LDS_PROG}, v{vPR}")
    a(f"v_mov_b32 v{vT0}, 0x3f803f80")
    a(f"v_and_b32 v{vT1}, 4, v0")
    a(f"v_cmp_eq_u32 vcc, 0, v{vT1}")
    a("s_nop 1")
    a(f"v_cndmask_b32 v{SEL}, 0, v{vT0}, vcc")
    a(f"v_cndmask_b32 v{SEL+1}, 0, v{vT0}, vcc")
    a(f"v_cndmask_b32 v{SEL+2}, v{vT0}, 0, vcc")
    a(f"v_cndmask_b32 v{SEL+3}, v{vT0}, 0, vcc")
    a(f"v_mov_b32 v{vT0}, 0x4444")
    a(f"v_mov_b32 v{vIDX}, 0xeeee")
    a(f"v_and_b32 v{vT1}, 1, v0")
    a(f"v_cmp_eq_u32 vcc, 0, v{vT1}")
    a("s_nop 1")
    a(f"v_cndmask_b32 v{vIDX}, v{vIDX}, v{vT0}, vcc")
    for r in range(4): a(f"v_mov_b32 v{F[1]+12+r}, 0")
    for r in range(8): a(f"v_mov_b32 v{P+r}, 0")
    for qi in range(NQ):
        for r in range(16): a(f"v_mov_b32 v{O[qi]+r}, 0")
        for r in range(4): a(f"v_mov_b32 v{LA[qi]+r}, 0")
    a("s_setprio 2")
    a(f"s_mul_i32 s{sT3}, s{sAMT}, {FLS}")
    a(f"s_add_u32 s{sT3}, s{sT3}, {FL_OFF + FL_A*FLS}")
    a(f"v_lshlrev_b32 v{vT1}, 24, v0")
    vGO = 10
    a(f"v_mov_b32 v{vGO}, {LDS_PROG + 4}")
    def poll(lbl, test):
        a(f"s_mov_b32 s{sSPIN}, 0")
        a.label(lbl)
        a(f"s_add_u32 s{sSPIN}, s{sSPIN}, 1")
        a(f"s_cmp_gt_u32 s{sSPIN}, 0x100000")
        a(f"s_cbranch_scc1 {lbl}_ok")
        a(f"s_cmp_eq_u32 s{sAW}, 0")
        a(f"s_cbranch_scc0 {lbl}_f")
        a(f"buffer_load_dword v{vT0}, v{vT1}, s[{SW}:{SW+3}], s{sT3} offen sc1")
        a("s_waitcnt vmcnt(0)")
        a(f"v_readfirstlane_b32 s{sT0}, v{vT0}")
        a("s_nop 1")
        a(f"v_mov_b32 v{vT0}, s{sT0}")
        a(f"ds_write_b32 v{vGO}, v{vT0}")
        for ln in test: a(ln)
        a(f"s_cbranch_scc1 {lbl}_ok")
        a(f"s_sleep {os.environ.get('SLA', '8')}")
        a(f"s_branch {lbl}")
        a.label(f"{lbl}_f")
        a(f"ds_read_b32 v{vT0}, v{vGO}")
        a("s_waitcnt lgkmcnt(0)")
        a(f"v_readfirstlane_b32 s{sT0}, v{vT0}")
        for ln in test: a(ln)
        a(f"s_cbranch_scc1 {lbl}_ok")
        a("s_sleep 3")
        a(f"s_branch {lbl}")
        a.label(f"{lbl}_ok")
    poll(f"{name}_pkv", [f"s_cmp_ge_u32 s{sT0}, {32 << 16}"])
    ST.mark(a, 3)
    for sl in range(3):
        dm = dma(sl)
        a(dm[0]); a("s_nop 0")
        for ln in dm[1:]: a(ln)
    a(f"s_and_b32 s{sT0}, s{sT0}, 0xffff")
    a(f"s_cmp_ge_u32 s{sT0}, 14")
    a(f"s_cbranch_scc1 {name}_pq_ok")
    poll(f"{name}_pq", [f"s_and_b32 s{sT0}, s{sT0}, 0xffff", f"s_cmp_ge_u32 s{sT0}, 14"])
    for qi in range(NQ):
        for f in range(2):
            a(f"s_add_u32 s{sT1}, s{sQO}, {qi*8192 + f*4096}")
            a(f"buffer_load_dwordx4 {v(Qf[qi]+4*f,4)}, v{vL16}, s[{SW}:{SW+3}], s{sT1} offen sc1")
    a("s_waitcnt vmcnt(8)")
    a(f"v_mov_b32 v{vPV}, 1")
    a(f"ds_write_b32 v{vPA}, v{vPV}")
    def spin(lb, ret):
        a(f"s_mov_b32 s{sSPIN}, 0")
        a.label(lb + "_l")
        a(f"ds_read_b32 v{vPG}, v{vPR}")
        a(f"s_add_u32 s{sSPIN}, s{sSPIN}, 1")
        a(f"s_cmp_gt_u32 s{sSPIN}, 0x400000")
        a(f"s_cbranch_scc1 {ret}")
        a("s_waitcnt lgkmcnt(0)")
        a(f"v_cmp_gt_u32 vcc, v{vPV}, v{vPG}")
        a("s_nop 1")
        a(f"s_cbranch_vccnz {lb}_l")
    spin(f"{name}_a0", f"{name}_a0_ret")
    a.label(f"{name}_a0_ret")
    def rd(tile, fr):
        return f"ds_read_b128 {v(F[tile%2]+4*fr,4)}, v{vL16} offset:{LDS_KV + (tile % 16)*4096 + fr*1024}"
    for t, fr in ((0, 0), (0, 1), (0, 2), (0, 3), (1, 0), (1, 1), (1, 2)): a(rd(t, fr))
    a("s_waitcnt vmcnt(0) lgkmcnt(0)")
    ST.mark(a, 4)
    for qi in range(NQ):
        a(f"{MF} {v(S[qi],16)}, {v(F[0],4)}, {v(Qf[qi],4)}, 0")
        a(f"{MF} {v(S[qi],16)}, {v(F[0]+4,4)}, {v(Qf[qi]+4,4)}, {v(S[qi],16)}")
    a("s_nop 15")
    def rowmax(src, dst):
        a(f"v_max3_f32 v{dst}, v{src}, v{src+1}, v{src+2}")
        for i in range(3, 15, 2):
            a(f"v_max3_f32 v{dst}, v{dst}, v{src+i}, v{src+i+1}")
        a(f"v_max_f32 v{dst}, v{dst}, v{src+15}")
    def xhalf_max(r, t):
        a(f"v_mov_b32 v{t}, v{r}")
        a("s_nop 1")
        a(f"v_permlane32_swap_b32 v{r}, v{t}")
        a("s_nop 1")
        a(f"v_max_f32 v{r}, v{r}, v{t}")
    for qi in range(NQ):
        rowmax(S[qi], vT0)
        xhalf_max(vT0, vT1)
        for r in range(16): a(f"v_sub_f32 v{C[qi]+r}, 0, v{vT0}")
    for r in range(16): a(f"v_add_f32 v{S[0]+r}, v{S[0]+r}, v{C[0]}")
    a(f"s_mov_b32 s{sIT}, 4")

    SCHED = os.environ.get("SCHED", "e0 e1 D e2 e3 e4 S e5 A e6 e7 c0 c1 B c2 c3 e8 e9 C e10 e11 c4 e12 e13 c5 e14 e15 c6 c7").split()
    slow = []
    def unit(out, q, u):
        t, qi = u // 2, u % 2
        tp, qp = (u - 1) // 2, (u - 1) % 2
        tn, qn = (u + 1) // 2, (u + 1) % 2
        cur, nxt = S[u % 2], S[(u + 1) % 2]
        ph, c = u % 8, u // 8
        post = {k: [] for k in "DSABC"}
        pre = {k: [] for k in "DSABC"}
        def lds(slot, ins, tag): post[slot].append((ins, tag))
        if qi == 0:
            lds("D", rd(t + 1, 3), ("V1", (t + 1) % 2))
            lds("A", rd(t + 2, 0), ("K0", t % 2))
            lds("B", rd(t + 2, 1), ("K1", t % 2))
        else:
            lds("C", rd(t + 2, 2), ("V0", t % 2))
        if ph == 2: lds("S", f"ds_read_b32 v{vPG}, v{vPR}", "PG")
        if ph == 7: lds("D", f"ds_write_b32 v{vPA}, v{vPV}", "PW")
        if ph == 6: pre["C"].append(f"v_add_u32 v{vPV}, 1, v{vPV}")
        dm = dma((c + 3) % 4)
        if 'nodma' in EXP: dm = [x if not x.startswith("buffer") else "s_nop 0" for x in dm]
        if ph == 3:
            post["S"].append((dm[1], None)); post["A"].append((dm[2], None)); post["B"].append((dm[3], None))
        if ph == 4:
            post["S"].append((dm[4], None)); post["C"].append((dm[5], None)); post["C"].append((dm[6], None))
        for tok in SCHED:
            if tok[0] == "e":
                i = int(tok[1:]); out.append(f"v_exp_f32 v{cur+i}, v{cur+i}")
            elif tok[0] == "c":
                i = int(tok[1:]); out.append(f"v_cvt_pk_bf16_f32 v{P+i}, v{cur+2*i}, v{cur+2*i+1}")
            else:
                out += pre[tok]
                if tok == "D":
                    if qi == 1:
                        tags = [("V1", t % 2), ("K0", (t + 1) % 2), ("K1", (t + 1) % 2), ("V0", (t + 1) % 2)] + (["PG"] if ph == 3 else [])
                        n = q.need(tags)
                        w = f"lgkmcnt({n})" if n is not None else ""
                        if ph == 7: w = "vmcnt(4) " + w
                        if w: out.append(f"s_waitcnt {w}")
                    out.append(f"{MF} {v(O[qp],16)}, {v(F[tp%2]+12,4)}, {v(P+4,4)}, {v(O[qp],16)}")
                    if ph == 3:
                        lb = f"{name}_slow{c}"
                        out.append(dm[0])
                        out.append(f"v_cmp_gt_u32 vcc, v{vPV}, v{vPG}")
                        pre["S"] += [f"s_cbranch_vccnz {lb}" if 'nochk' not in EXP else "s_nop 0", f"{lb}_ret:"]
                        if lb not in slow: slow.append(lb)
                elif tok == "S":
                    out.append(f"v_smfmac_f32_16x16x64_bf16 {v(LA[qp],4)}, {v(SEL,4)}, {v(P,8)}, v{vIDX}")
                elif tok == "A":
                    out.append(f"{MF} {v(nxt,16)}, {v(F[tn%2],4)}, {v(Qf[qn],4)}, {v(C[qn],16)}")
                elif tok == "B":
                    out.append(f"{MF} {v(nxt,16)}, {v(F[tn%2]+4,4)}, {v(Qf[qn]+4,4)}, {v(nxt,16)}")
                elif tok == "C":
                    out.append(f"{MF} {v(O[qi],16)}, {v(F[t%2]+8,4)}, {v(P,4)}, {v(O[qi],16)}")
                for ins, tag in post[tok]:
                    out.append(ins)
                    if tag: q.issue(tag)
    q = Q("lgkm", 15)
    dummy = []
    for u in range(32): unit(dummy, q, u)
    body = []
    for u in range(32): unit(body, q, u)
    a(".p2align 6")
    a.label(f"{name}_aloop")
    for ln in body: a(ln)
    a(f"s_sub_u32 s{sIT}, s{sIT}, 1")
    if 'stq' in EXP and ST.on:
        for it, idx in ((3, 1), (2, 2), (1, 3)):
            a(f"s_cmp_lg_u32 s{sIT}, {it}")
            a(f"s_cbranch_scc1 {name}_stq{it}")
            ST.mark(a, idx)
            a.label(f"{name}_stq{it}")
    a(f"s_cmp_lg_u32 s{sIT}, 0")
    a(f"s_cbranch_scc1 {name}_aloop")
    a(f"{MF} {v(O[1],16)}, {v(F[1]+12,4)}, {v(P+4,4)}, {v(O[1],16)}")
    a(f"v_smfmac_f32_16x16x64_bf16 {v(LA[1],4)}, {v(SEL,4)}, {v(P,8)}, v{vIDX}")
    a(f"v_mov_b32 v{vPG}, {f32(2.0**40)}")
    for qi in range(NQ):
        if qi == 1: a("s_nop 3")
        a(f"v_add_f32 v{LA[qi]}, v{LA[qi]}, v{LA[qi]+1}")
        a(f"v_cmp_nle_f32 vcc, v{LA[qi]}, v{vPG}")
        a("s_nop 1")
        a(f"s_cbranch_vccnz {name}_fb{qi}")
        a.label(f"{name}_ok{qi}")
        a(f"v_rcp_f32 v{vT0}, v{LA[qi]}")
        a("s_nop 0")
        for r in range(16): a(f"v_mul_f32 v{O[qi]+r}, v{O[qi]+r}, v{vT0}")
        for i in range(8): a(f"v_cvt_pk_bf16_f32 v{S[1]+8*qi+i}, v{O[qi]+2*i}, v{O[qi]+2*i+1}")
        for f in range(2):
            a(f"s_add_u32 s{sT1}, s{sOO}, {qi*8192 + f*4096}")
            a(f"buffer_store_dwordx4 {v(S[1]+8*qi+4*f,4)}, v{vL16}, s[{SW}:{SW+3}], s{sT1} offen sc1")
    a(f"s_mul_i32 s{sT0}, s{sAMT}, {FLS}")
    a(f"s_lshl_b32 s{sT1}, s{sAH}, 2")
    a(f"s_add_u32 s{sT0}, s{sT0}, s{sT1}")
    a(f"s_add_u32 s{sT0}, s{sT0}, {FL_OFF + FL_O*FLS}")
    a(f"v_mov_b32 v{vT0}, 1")
    a(f"v_lshlrev_b32 v{vT1}, 24, v0")
    a("s_waitcnt vmcnt(0)")
    a(f"buffer_atomic_add v{vT0}, v{vT1}, s[{SW}:{SW+3}], s{sT0} offen sc1")
    ST.mark(a, 5)
    a(f"s_cmp_eq_u32 s{sAW}, 0")
    a(f"s_cbranch_scc0 {name}_attdone")
    a(f"s_mul_i32 s{sT3}, s{sMT}, {FLS}")
    a(f"s_add_u32 s{sT3}, s{sT3}, {FL_OFF + FL_O*FLS}")
    a(f"v_lshrrev_b32 v{vT0}, 4, v0")
    a(f"v_lshlrev_b32 v{vT1}, 2, v0")
    a(f"v_lshl_add_u32 v{vT1}, v{vT0}, 24, v{vT1}")
    a(f"s_mov_b32 s{sSPIN}, 0")
    a.label(f"{name}_opoll")
    a(f"buffer_load_dword v{vT0}, v{vT1}, s[{SW}:{SW+3}], s{sT3} offen sc1")
    a(f"s_add_u32 s{sSPIN}, s{sSPIN}, 1")
    a("s_waitcnt vmcnt(0)")
    a(f"v_cmp_le_u32 vcc, 4, v{vT0}")
    a("s_nop 1")
    a(f"s_or_b32 s{sT0}, vcc_lo, 0x80000000")
    a(f"v_mov_b32 v{vT0}, s{sT0}")
    a(f"ds_or_b32 v{vGO}, v{vT0} offset:8")
    a(f"s_cmp_eq_u32 s{sT0}, 0x8000ffff")
    a(f"s_cbranch_scc1 {name}_attdone")
    a(f"s_cmp_gt_u32 s{sSPIN}, 0x100000")
    a(f"s_cbranch_scc1 {name}_attdone")
    a(f"s_sleep {os.environ.get('SLO', '2')}")
    a(f"s_branch {name}_opoll")
    for lb in slow:
        a.label(lb)
        spin(lb, lb + "_ret")
        a(f"s_branch {lb}_ret")
    for qi in range(NQ):
        a.label(f"{name}_fb{qi}")
        gen_fallback(a, name, qi, Qf[qi], C[qi], O[qi], LA[qi], P, SEL, vIDX, vL16, vT0, vT1, rowmax, xhalf_max)
        a(f"s_branch {name}_ok{qi}")
    a.label(f"{name}_attdone")

def gen_fallback(a, name, qi, Qr, C, O, LA, P, SEL, vIDX, vL16, vT0, vT1, rowmax, xhalf_max):
    F = 192
    vM = 11
    S0 = 208
    PP = 224
    a("s_nop 15")
    a(f"v_mov_b32 v{vM}, 0xff800000")
    a(f"s_mov_b32 s{sT2}, 0")
    a.label(f"{name}_fb1_{qi}")
    for f in range(2):
        a(f"buffer_load_dwordx4 {v(F+4*f,4)}, v{vL16}, s[{SKV}:{SKV+3}], s{sT2} offen offset:{f*1024}")
    a("s_waitcnt vmcnt(0)")
    a(f"{MF} {v(S0,16)}, {v(F,4)}, {v(Qr,4)}, 0")
    a(f"{MF} {v(S0,16)}, {v(F+4,4)}, {v(Qr+4,4)}, {v(S0,16)}")
    a("s_nop 15")
    rowmax(S0, vT0)
    a(f"v_max_f32 v{vM}, v{vM}, v{vT0}")
    a(f"s_add_u32 s{sT2}, s{sT2}, 4096")
    a(f"s_cmp_lt_u32 s{sT2}, {KV_SIZE}")
    a(f"s_cbranch_scc1 {name}_fb1_{qi}")
    xhalf_max(vM, vT1)
    for r in range(16): a(f"v_sub_f32 v{C+r}, 0, v{vM}")
    for r in range(16): a(f"v_mov_b32 v{O+r}, 0")
    for r in range(4): a(f"v_mov_b32 v{LA+r}, 0")
    a(f"s_mov_b32 s{sT2}, 0")
    a.label(f"{name}_fb2_{qi}")
    for f in range(4):
        a(f"buffer_load_dwordx4 {v(F+4*f,4)}, v{vL16}, s[{SKV}:{SKV+3}], s{sT2} offen offset:{f*1024}")
    a("s_waitcnt vmcnt(0)")
    a(f"{MF} {v(S0,16)}, {v(F,4)}, {v(Qr,4)}, {v(C,16)}")
    a(f"{MF} {v(S0,16)}, {v(F+4,4)}, {v(Qr+4,4)}, {v(S0,16)}")
    a("s_nop 15")
    for r in range(16): a(f"v_exp_f32 v{S0+r}, v{S0+r}")
    a("s_nop 0")
    for i in range(8): a(f"v_cvt_pk_bf16_f32 v{PP+i}, v{S0+2*i}, v{S0+2*i+1}")
    a("s_nop 1")
    a(f"{MF} {v(O,16)}, {v(F+8,4)}, {v(PP,4)}, {v(O,16)}")
    a(f"{MF} {v(O,16)}, {v(F+12,4)}, {v(PP+4,4)}, {v(O,16)}")
    a(f"v_smfmac_f32_16x16x64_bf16 {v(LA,4)}, {v(SEL,4)}, {v(PP,8)}, v{vIDX}")
    a("s_nop 7")
    a(f"s_add_u32 s{sT2}, s{sT2}, 4096")
    a(f"s_cmp_lt_u32 s{sT2}, {KV_SIZE}")
    a(f"s_cbranch_scc1 {name}_fb2_{qi}")
    a("s_nop 15")
    a(f"v_add_f32 v{LA}, v{LA}, v{LA+1}")

GACC = 128
def gacc(nb, rb): return GACC + (rb * 2 + nb) * 16

def gen_gemm(a, name, ST):
    vL16, vB0, vB1, vR0, vR1, vFO, vFT = 1, 4, 5, 6, 7, 8, 9
    t0, t1, t2, t3 = 10, 11, 12, 13
    BF = [16, 24]
    AF = [32 + 16 * i for i in range(D)]
    GW = sWAVE
    sAB = sQO
    common(a)
    srd(a, SWC, 6, 7340032)
    a(f"v_lshlrev_b32 v{vL16}, 4, v0")
    a(f"v_lshrrev_b32 v{t0}, 3, v0")
    a(f"v_lshlrev_b32 v{t0}, 11, v{t0}")
    a(f"v_and_b32 v{t1}, 7, v0")
    a(f"v_bfe_u32 v{t2}, v0, 4, 1")
    a(f"v_lshlrev_b32 v{t2}, 2, v{t2}")
    a(f"v_xor_b32 v{t1}, v{t1}, v{t2}")
    a(f"v_lshl_add_u32 v{t0}, v{t1}, 4, v{t0}")
    a(f"s_lshl_b32 s{sT0}, s{sNT}, 7")
    a(f"s_lshl_b32 s{sT1}, s{GW}, 15")
    a(f"s_add_u32 s{sT0}, s{sT0}, s{sT1}")
    a(f"v_add_u32 v{vB0}, s{sT0}, v{t0}")
    a(f"v_add_u32 v{vB1}, {16384 - 1024}, v{vB0}")
    a(f"s_mul_i32 s{sM0}, s{GW}, {D*2048}")
    a(f"s_add_u32 s{sM0}, s{sM0}, {LDS_GB}")
    a(f"s_mul_i32 s{sOO}, s{sMT}, {A2_MT}")
    a(f"s_lshl_b32 s{sT0}, s{GW}, 12")
    a(f"s_add_u32 s{sOO}, s{sOO}, s{sT0}")
    a(f"s_add_u32 s{sAB}, s{sOO}, {64*4096}")
    a(f"s_mul_i32 s{sHS}, s{sMT}, 7")
    a(f"s_lshr_b32 s{sHS}, s{sHS}, 1")
    if 'g2fix' in EXP: a(f"s_mov_b32 s{sHS}, 0")
    a(f"v_bfe_u32 v{t0}, v0, 4, 1")
    a(f"v_and_b32 v{t2}, 3, v0")
    a(f"v_lshlrev_b32 v{t0}, 5, v{t0}")
    a(f"v_lshl_add_u32 v{t0}, v{t2}, 3, v{t0}")
    a(f"v_bfe_u32 v{t2}, v0, 2, 2")
    a(f"v_lshrrev_b32 v{t1}, 5, v0")
    a(f"v_lshl_add_u32 v{t1}, v{t1}, 2, v{t2}")
    a(f"v_bfe_u32 v{t3}, v0, 3, 1")
    a(f"v_lshlrev_b32 v{t3}, 6, v{t3}")
    a(f"v_xor_b32 v{t3}, v{t3}, v{t0}")
    a(f"v_lshl_add_u32 v{t3}, v{t1}, 7, v{t3}")
    a(f"v_add_u32 v{vR0}, s{sM0}, v{t3}")
    a(f"v_xor_b32 v{vR1}, 64, v{vR0}")
    a(f"v_lshrrev_b32 v{t0}, 2, v0")
    a(f"v_mul_u32_u24 v{vFO}, {FLS}, v0")
    a(f"v_lshl_add_u32 v{vFO}, v{t0}, 24, v{vFO}")
    a(f"v_mov_b32 v{vFT}, 0")
    a(f"v_cmp_gt_u32 vcc, 4, v0")
    a("s_nop 1")
    a(f"v_cndmask_b32 v{vFT}, v{vFT}, 12, vcc")
    a(f"v_cmp_eq_u32 vcc, 3, v0")
    a("s_nop 1")
    a(f"v_cndmask_b32 v{vFT}, v{vFT}, 14, vcc")
    for r in range(GACC, 256): a(f"v_mov_b32 v{r}, 0")
    vGO = 14
    a(f"v_mov_b32 v{vGO}, {LDS_PROG + 8}")
    def poll(lbl, line, stage):
        a(f"s_mul_i32 s{sT3}, s{sMT}, {4*FLS}")
        a(f"s_add_u32 s{sT3}, s{sT3}, {FL_OFF + line*FLS}")
        a(f"s_mov_b32 s{sSPIN}, 0")
        a.label(lbl)
        a(f"s_add_u32 s{sSPIN}, s{sSPIN}, 1")
        a(f"s_cmp_gt_u32 s{sSPIN}, 0x100000")
        a(f"s_cbranch_scc1 {lbl}_ok")
        a(f"s_cmp_eq_u32 s{GW}, 0")
        a(f"s_cbranch_scc0 {lbl}_f")
        a(f"buffer_load_dword v{t0}, v{vFO}, s[{SW}:{SW+3}], s{sT3} offen sc1")
        a("s_waitcnt vmcnt(0)")
        a(f"v_cmp_gt_u32 vcc, v{vFT}, v{t0}")
        a(f"v_mov_b32 v{t0}, {stage}")
        a(f"s_cbranch_vccz {lbl}_set")
        a(f"s_sleep {os.environ.get('SLG', '8')}")
        a(f"s_branch {lbl}")
        a.label(f"{lbl}_f")
        a(f"ds_read_b32 v{t0}, v{vGO}")
        a("s_waitcnt lgkmcnt(0)")
        a(f"v_readfirstlane_b32 s{sT0}, v{t0}")
        a(f"s_cmp_ge_u32 s{sT0}, {stage}")
        a(f"s_cbranch_scc1 {lbl}_ok")
        a("s_sleep 2")
        a(f"s_branch {lbl}")
        a.label(f"{lbl}_set")
        a(f"ds_write_b32 v{vGO}, v{t0}")
        a.label(f"{lbl}_ok")
    poll(f"{name}_ph", FL_H, 1)
    a(f"s_setprio {os.environ.get('GP', '0')}")
    ST.mark(a, 4)
    def ldB(i, sel=False):
        if 'gnold' in EXP: return []
        pre = []
        if sel:
            lb = a.newlabel("nosel")
            pre = [f"s_cmp_eq_u32 s{sMODE}, 0", f"s_cbranch_scc1 {lb}", f"s_call_b64 s[{sRET}:{sRET+1}], {name}_gsel", f"{lb}:"]
        return pre + [f"s_add_u32 m0, s{sM0}, {i*2048}",
                f"s_lshl_b32 s{sT1}, s{sHS}, 17",
                f"buffer_load_dwordx4 v{vB0}, s[{SWC}:{SWC+3}], s{sT1} offen lds",
                f"buffer_load_dwordx4 v{vB1}, s[{SWC}:{SWC+3}], s{sT1} offen offset:1024 lds",
                f"s_lshl_b32 s{sT2}, s{sHS}, 14",
                f"s_add_u32 s{sT2}, s{sT2}, s{sAB}",
                f"s_add_u32 s{sHS}, s{sHS}, 1",
                f"s_cmp_eq_u32 s{sHS}, 56",
                f"s_cselect_b32 s{sHS}, 0, s{sHS}"]
    def ldA(i, rb):
        if 'gnold' in EXP: return "s_nop 0"
        return f"buffer_load_dwordx4 {v(AF[i]+4*rb,4)}, v{vL16}, s[{SW}:{SW+3}], s{sT2} offen offset:{rb*1024} sc1"
    for i in range(D):
        for ln in ldB(i): a(ln)
        for rb in range(4): a(ldA(i, rb))
    def rdB(i):
        b = BF[i % 2]
        return [f"ds_read_b64_tr_b16 {v(b+4*nb+2*j,2)}, v{vR0+nb} offset:{(i%D)*2048 + j*1024}" for nb in range(2) for j in range(2)]
    a(f"s_waitcnt vmcnt({6*D - 2})")
    for ln in rdB(0): a(ln)
    def step(i, load):
        n = 4 + 6 * (D - 2) if load else max(0, 4 + 6 * (D - 2 - i))
        if not load and i == D - 1: n = 0
        a(f"s_waitcnt vmcnt({n}) lgkmcnt(0)")
        rds = rdB(i + 1) if (load or i < D - 1) else []
        lb = ldB(i, True) if load else []
        place = {k: [] for k in range(8)}
        lA = [ldA(i, rb) for rb in range(4)] if load else []
        mode = os.environ.get("GM", "332")
        if mode == "il":
            place[0] += rds + lb
            for rb in range(4): place[2 * rb + 1] += lA[rb:rb + 1]
        elif mode == "44":
            for k in range(len(rds)): place[k].append(rds[k])
            place[3] += lb + lA[:1]
            place[7] += lA[1:]
        elif mode == "44b":
            place[3] += rds + lb + lA[:2]
            place[7] += lA[2:]
        elif mode == "332":
            for k in range(len(rds)): place[k].append(rds[k])
            place[2] += lb
            place[5] += lA[:3]
            place[7] += lA[3:]
        k = 0
        for rb in range(4):
            for nb in range(2):
                c = v(gacc(nb, rb), 16)
                a(f"{MF} {c}, {v(BF[i%2]+4*nb,4)}, {v(AF[i]+4*rb,4)}, {c}")
                for ln in place[k]: a(ln)
                k += 1
    NIT = 72 // D
    sw_it, sw_pos = (56 - D) // D, (56 - D) % D
    a(f"s_mov_b32 s{sIT}, 0")
    a(f"s_mov_b32 s{sMODE}, 0")
    a(f"s_mov_b32 s{sRDY}, 0")
    a(f"s_mov_b32 s{sDONE}, 0")
    a(".p2align 6")
    a.label(f"{name}_gloop")
    for i in range(D):
        if i == sw_pos:
            a(f"s_cmp_eq_u32 s{sIT}, {sw_it}")
            a(f"s_cbranch_scc1 {name}_gsw")
            a.label(f"{name}_gsw_ret")
        step(i, True)
    a(f"s_add_u32 s{sIT}, s{sIT}, 1")
    if 'stq' in EXP and ST.on:
        for it, idx in ((1, 1), (4, 2)):
            a(f"s_cmp_lg_u32 s{sIT}, {it}")
            a(f"s_cbranch_scc1 {name}_gstq{it}")
            ST.mark(a, idx)
            a.label(f"{name}_gstq{it}")
    a(f"s_cmp_lt_u32 s{sIT}, {NIT - 1}")
    a(f"s_cbranch_scc1 {name}_gloop")
    for i in range(D): step(i, False)
    a(f"s_branch {name}_final")
    a.label(f"{name}_gsw")
    if 'stsw' in EXP: ST.mark(a, 3)
    a(f"s_mov_b32 s{SWC}, s4")
    a(f"s_mov_b32 s{SWC+1}, s5")
    a(f"s_mov_b32 s{SWC+2}, 2097152")
    a(f"s_mov_b32 s{sHS}, 0")
    a(f"s_mov_b32 s{sAB}, s{sOO}")
    a(f"s_lshl_b32 s{sT0}, s2, 2")
    a(f"s_add_u32 s{sT0}, s{sT0}, s{GW}")
    a(f"s_lshl_b32 s{sT0}, s{sT0}, 11")
    a(f"v_and_b32 v{t1}, 31, v0")
    a(f"v_lshlrev_b32 v{t1}, 6, v{t1}")
    if 'nopfo' in EXP: a(f"buffer_load_dword v{t2}, v{t1}, s[{SWC}:{SWC+3}], s{sT0} offen")
    a(f"s_mov_b32 s{sMODE}, 1")
    a(f"s_mul_i32 s{sT3}, s{sMT}, {FLS}")
    a(f"s_add_u32 s{sT3}, s{sT3}, {FL_OFF + FL_O*FLS}")
    a(f"v_lshrrev_b32 v{t0}, 4, v0")
    a(f"v_lshlrev_b32 v{vFO}, 2, v0")
    a(f"v_lshl_add_u32 v{vFO}, v{t0}, 24, v{vFO}")
    a(f"s_branch {name}_gsw_ret")
    a.label(f"{name}_gsel")
    a(f"s_mov_b32 s{sSPIN}, 0")
    a.label(f"{name}_gsel_l")
    a(f"s_andn2_b32 s{sT0}, s{sRDY}, s{sDONE}")
    a(f"s_cbranch_scc1 {name}_gsel_ok")
    a(f"s_add_u32 s{sSPIN}, s{sSPIN}, 1")
    a(f"s_cmp_gt_u32 s{sSPIN}, 0x100000")
    a(f"s_cselect_b32 s{sRDY}, 0xffff, s{sRDY}")
    a(f"s_cbranch_scc1 {name}_gsel_l")
    a(f"s_cmp_eq_u32 s{sSPIN}, 1")
    a(f"s_cbranch_scc1 {name}_gsel_fns")
    a("s_sleep 2")
    a(f"s_or_b32 s{sT0}, s{GW}, s{sT1}")
    a(f"s_cmp_eq_u32 s{sT0}, 0")
    a(f"s_cbranch_scc0 {name}_gsel_fns")
    a(f"s_sleep {os.environ.get('SLG', '8')}")
    a(f"buffer_load_dword v{t0}, v{vFO}, s[{SW}:{SW+3}], s{sT3} offen sc1")
    a("s_waitcnt vmcnt(0)")
    a(f"v_cmp_le_u32 vcc, 4, v{t0}")
    a("s_nop 1")
    a(f"v_mov_b32 v{t0}, vcc_lo")
    a(f"ds_or_b32 v{vGO}, v{t0} offset:4")
    a.label(f"{name}_gsel_fns")
    a(f"ds_read_b32 v{t0}, v{vGO} offset:4")
    a("s_waitcnt lgkmcnt(0)")
    a(f"v_readfirstlane_b32 s{sRDY}, v{t0}")
    a(f"s_lshr_b32 s{sT1}, s{sRDY}, 31")
    a(f"s_and_b32 s{sRDY}, s{sRDY}, 0xffff")
    a(f"s_branch {name}_gsel_l")
    a.label(f"{name}_gsel_ok")
    a(f"s_ff1_i32_b32 s{sHS}, s{sT0}")
    a(f"s_bitset1_b32 s{sDONE}, s{sHS}")
    if ST.on:
        a(f"s_cmp_eq_u32 s{sDONE}, 0xffff")
        a(f"s_cbranch_scc0 {name}_gsel_r")
        ST.mark(a, 5)
        a.label(f"{name}_gsel_r")
    a(f"s_setpc_b64 s[{sRET}:{sRET+1}]")

def gen_final(a, name, ST):
    ST.mark(a, 6)
    vX, vB2, vOA, vRA = 96, 104, 108, 110
    a(f"v_lshrrev_b32 v2, 3, v0")
    a(f"v_and_b32 v3, 7, v0")
    a(f"s_lshl_b32 s{sT0}, s{sMT}, 7")
    a(f"s_lshl_b32 s{sT1}, s{sWAVE}, 4")
    a(f"s_add_u32 s{sT0}, s{sT0}, s{sT1}")
    a(f"s_lshl_b32 s{sT0}, s{sT0}, 11")
    a(f"s_lshl_b32 s{sT2}, s{sNT}, 7")
    a(f"s_add_u32 s{sT0}, s{sT0}, s{sT2}")
    a(f"s_add_u32 s{sT1}, s{sT0}, 16384")
    a(f"v_lshlrev_b32 v4, 4, v3")
    a(f"v_lshl_add_u32 v{vOA}, v2, 11, v4")
    a(f"buffer_load_dwordx4 {v(vX,4)}, v{vOA}, s[{SX}:{SX+3}], s{sT0} offen")
    a(f"buffer_load_dwordx4 {v(vX+4,4)}, v{vOA}, s[{SX}:{SX+3}], s{sT1} offen")
    a(f"buffer_load_dwordx4 {v(vB2,4)}, v4, s[{SB2}:{SB2+3}], s{sT2} offen")
    a(f"v_mul_u32_u24 v{vRA}, {RED_STRIDE}, v2")
    a(f"v_lshl_add_u32 v{vRA}, v3, 5, v{vRA}")
    a(f"s_mul_i32 s{sT3}, s{sWAVE}, {16*RED_STRIDE}")
    a(f"v_add_u32 v{vRA}, s{sT3}, v{vRA}")
    a(f"v_add_u32 v{vRA+1}, {2*RED_PART}, v{vRA}")
    a("s_waitcnt vmcnt(3) lgkmcnt(0)")
    a("s_barrier")
    a(f"s_cmp_ge_u32 s{sWAVE}, 4")
    a(f"s_cbranch_scc1 {name}_fin2")
    a(f"v_and_b32 v2, 31, v0")
    a(f"v_mul_u32_u24 v2, {RED_STRIDE}, v2")
    a(f"v_lshrrev_b32 v3, 5, v0")
    a(f"v_lshl_add_u32 v2, v3, 4, v2")
    a(f"s_mul_i32 s{sT3}, s{sWAVE}, {RED_PART}")
    a(f"v_add_u32 v2, s{sT3}, v2")
    for rb in range(4):
        for nb in range(2):
            for g in range(4):
                a(f"ds_write_b128 v2, {v(gacc(nb,rb)+4*g,4)} offset:{rb*32*RED_STRIDE + nb*128 + g*32}")
    a("s_waitcnt lgkmcnt(0)")
    a.label(f"{name}_fin2")
    a("s_barrier")
    Dd = 16
    for rg in range(2):
        for p in range(4):
            for hh in range(2):
                a(f"ds_read_b128 {v(Dd + rg*32 + p*8 + hh*4, 4)}, v{vRA + p//2} offset:{(p%2)*RED_PART + rg*8*RED_STRIDE + hh*16}")
    a("s_waitcnt vmcnt(0)")
    for i in range(4):
        a(f"v_lshlrev_b32 v{80+2*i}, 16, v{vB2+i}")
        a(f"v_and_b32 v{80+2*i+1}, 0xffff0000, v{vB2+i}")
    for rg in range(2):
        for i in range(4):
            a(f"v_lshlrev_b32 v{88+2*i}, 16, v{vX+4*rg+i}")
            a(f"v_and_b32 v{88+2*i+1}, 0xffff0000, v{vX+4*rg+i}")
        for i in range(0, 8, 2):
            a(f"v_pk_add_f32 {v(88+i,2)}, {v(88+i,2)}, {v(80+i,2)}")
        a(f"s_waitcnt lgkmcnt({8 if rg == 0 else 0})")
        b = Dd + rg * 32
        for i in range(0, 8, 2):
            a(f"v_pk_add_f32 {v(b+i,2)}, {v(b+i,2)}, {v(b+8+i,2)}")
            a(f"v_pk_add_f32 {v(b+16+i,2)}, {v(b+16+i,2)}, {v(b+24+i,2)}")
        for i in range(0, 8, 2):
            a(f"v_pk_add_f32 {v(b+i,2)}, {v(b+i,2)}, {v(b+16+i,2)}")
        for i in range(0, 8, 2):
            a(f"v_pk_add_f32 {v(b+i,2)}, {v(b+i,2)}, {v(88+i,2)}")
        for i in range(4):
            a(f"v_cvt_pk_bf16_f32 v{b+8+i}, v{b+2*i}, v{b+2*i+1}")
        a(f"buffer_store_dwordx4 {v(b+8,4)}, v{vOA}, s[{SO}:{SO+3}], s{sT0 if rg == 0 else sT1} offen")
    ST.flush(a, 7, SW, sWAVE, ST_OFF)
```

```python
import math
from asmlib import *
from layout import *

LDS_A = 0
LDS_B = 98304
LDS_M = 159744
LDS_QX = 49152
SLOT_B = 20480
QSCALE = (32 ** -0.5) * math.log2(math.e)
G_C0 = -2.0 * math.sqrt(2.0 / math.pi) * math.log2(math.e)
G_C1 = G_C0 * 0.044715

SX, SB, SS, SW, SB1, SD = 24, 28, 32, 36, 40, 44
sMT, sCW, sFLIP, sCBM, sCBS, sLDW, sLDS, sWAVE, sTYPE = 48, 49, 50, 51, 52, 53, 54, 55, 56
sT0, sT1, sT2, sT3, sT4, sT5 = 57, 58, 59, 60, 61, 62
sPH, sKT, sSA, sSB, sOA, sOB, sOS, sSTB, sSTS = 63, 64, 65, 66, 67, 68, 69, 70, 71
sCSL = 74
sWI = 75
sPFM = 74
import os
EXP = os.environ.get('EXP', '')
DEFER = int(os.environ.get('DEFER', '4'))
BARAT = int(os.environ.get('BARAT', '3'))

def srd(a, base, ptr, size):
    a(f"s_mov_b32 s{base}, s{ptr}")
    a(f"s_mov_b32 s{base+1}, s{ptr+1}")
    a(f"s_mov_b32 s{base+2}, {size}")
    a(f"s_mov_b32 s{base+3}, 0x20000")

ST = Stamps(False)
FUSED = False
def gen_k2(name, stflag="sc1", stamps=False, phase2=None):
    global ST, FUSED
    FUSED = phase2 is not None
    ST = Stamps(stamps, 76, 0)
    a = Asm()
    a(f".globl {name}\n.p2align 8\n.type {name},@function")
    a.label(name)
    a("s_cmp_ge_u32 s2, 256")
    a(f"s_cbranch_scc1 {name}_exit")
    ST.mark(a, 0)
    a("s_load_dwordx8 s[8:15], s[0:1], 0")
    a("s_load_dwordx4 s[16:19], s[0:1], 48")
    a("s_load_dwordx4 s[20:23], s[0:1], 88")
    a("s_load_dwordx2 s[4:5], s[0:1], 32")
    a("s_load_dwordx2 s[6:7], s[0:1], 64")
    a("s_load_dwordx4 s[96:99], s[0:1], 72")
    a("v_lshrrev_b32 v1, 6, v0")
    a("v_and_b32 v0, 63, v0")
    a(f"v_readfirstlane_b32 s{sWAVE}, v1")
    a(f"s_and_b32 s{sT0}, s2, 7")
    a(f"s_lshr_b32 s{sT1}, s2, 3")
    a(f"s_and_b32 s{sMT}, s{sT0}, 1")
    a(f"s_lshl_b32 s{sMT}, s{sMT}, 2")
    a(f"s_and_b32 s{sT2}, s{sT1}, 3")
    a(f"s_add_u32 s{sMT}, s{sMT}, s{sT2}")
    a(f"s_lshr_b32 s{sT0}, s{sT0}, 1")
    a(f"s_lshr_b32 s{sT2}, s{sT1}, 2")
    a(f"s_mul_i32 s{sCW}, s{sT0}, 7")
    a(f"s_add_u32 s{sCW}, s{sCW}, s{sT2}")
    a(f"s_add_u32 s{sT0}, s{sT0}, 28")
    a(f"s_cmp_lt_u32 s{sT2}, 7")
    a(f"s_cselect_b32 s{sCW}, s{sCW}, s{sT0}")
    a(f"s_cselect_b32 s{sTYPE}, 0, 1")
    a(f"s_sub_u32 s{sT5}, s{sWAVE}, 4")
    a(f"s_cmp_lt_u32 s{sWAVE}, 4")
    a(f"s_cbranch_scc1 {name}_comp")
    a(f"s_cmp_eq_u32 s{sTYPE}, 0")
    a(f"s_cbranch_scc0 {name}_ll")
    gen_loader(a, name, False)
    a.label(f"{name}_ll")
    light_decode(a)
    gen_loader(a, name, True)
    a.label(f"{name}_comp")
    a(f"s_lshl_b32 s{sCBM}, s{sCW}, 2")
    a(f"s_mov_b32 s{sFLIP}, 0")
    a(f"s_cmp_eq_u32 s{sTYPE}, 0")
    a(f"s_cbranch_scc1 {name}_comp2")
    light_decode(a)
    a.label(f"{name}_comp2")
    a("s_waitcnt lgkmcnt(0)")
    srd(a, SX, 8, 4194304)
    srd(a, SW, 22, WS_USED)
    srd(a, SD, 20, 256)
    gen_compute(a, name, stflag)
    if phase2: phase2(a, name, ST)
    a.label(f"{name}_exit")
    a("s_endpgm")
    return a.text()

def light_decode(a):
    a(f"s_and_b32 s{sTYPE}, s{sCW}, 1")
    a(f"s_add_u32 s{sTYPE}, s{sTYPE}, 1")
    a(f"s_bfe_u32 s{sFLIP}, s{sCW}, 0x10001")

def gen_loader(a, name, light):
    L = name + ("_ll" if light else "_ld")
    vA, vB, vS = 2, 10, 14
    vC = 16
    vCA = 26
    vD = 32
    vCB = 112
    t0, t1, t2, t3 = 96, 97, 98, 99
    LW = sT5
    LDW = 7168
    NDMA = 10 if light else 13
    NRD = 4 if light else 10
    a(f"v_lshrrev_b32 v{t0}, 3, v0")
    a(f"v_and_b32 v{t1}, 7, v0")
    a(f"v_lshrrev_b32 v{t2}, 4, v0")
    a(f"v_xor_b32 v{t2}, v{t1}, v{t2}")
    a(f"v_lshlrev_b32 v{t3}, 11, v{t0}")
    a(f"v_lshl_add_u32 v{t3}, v{t2}, 4, v{t3}")
    a(f"s_lshl_b32 s{sT0}, s{sMT}, 19")
    a(f"s_lshl_b32 s{sT1}, s{LW}, 17")
    a(f"s_add_u32 s{sT0}, s{sT0}, s{sT1}")
    a(f"v_add_u32 v{t3}, s{sT0}, v{t3}")
    a(f"v_xor_b32 v{t2}, 64, v{t3}")
    if light:
        a(f"s_lshl_b32 s{sT1}, s{sFLIP}, 16")
    for q in range(8):
        src = t3 if q % 2 == 0 else t2
        if light:
            a(f"s_xor_b32 s{sT2}, s{sT1}, {q*16384}")
            a(f"s_sub_u32 s{sT2}, s{sT2}, {(q%4)*1024}")
            a(f"v_add_u32 v{vA+q}, s{sT2}, v{src}")
        else:
            a(f"v_add_u32 v{vA+q}, {q*16384 - (q%4)*1024}, v{src}")
    if light:
        a(f"s_lshl_b32 s{sT0}, s{LW}, 10")
        a(f"v_lshlrev_b32 v{vB}, 4, v0")
        a(f"v_add_u32 v{vB}, s{sT0}, v{vB}")
        a(f"s_add_u32 s{sSB}, s{sT0}, {LDS_B}")
    else:
        a(f"v_mul_u32_u24 v{t0}, {LDW}, v{t0}")
        a(f"v_bfe_u32 v{t2}, v0, 4, 1")
        a(f"v_lshlrev_b32 v{t2}, 2, v{t2}")
        a(f"v_xor_b32 v{t1}, v{t1}, v{t2}")
        a(f"v_lshl_add_u32 v{t3}, v{t1}, 4, v{t0}")
        a(f"s_and_b32 s{sT0}, s{LW}, 1")
        a(f"s_mul_i32 s{sT0}, s{sT0}, {32*LDW}")
        a(f"s_lshl_b32 s{sT1}, s{sCW}, 8")
        a(f"s_add_u32 s{sT0}, s{sT0}, s{sT1}")
        a(f"s_lshr_b32 s{sT1}, s{LW}, 1")
        a(f"s_lshl_b32 s{sT1}, s{sT1}, 7")
        a(f"s_add_u32 s{sT0}, s{sT0}, s{sT1}")
        a(f"v_add_u32 v{vB}, s{sT0}, v{t3}")
        for t in range(1, 4):
            a(f"v_add_u32 v{vB+t}, {t*(8*LDW - 1024)}, v{vB}")
        a(f"s_lshl_b32 s{sSB}, s{LW}, 12")
        a(f"s_add_u32 s{sSB}, s{sSB}, {LDS_B}")
        a(f"s_mul_i32 s{sT4}, s{LW}, 3072")
        a(f"s_sub_u32 s{sT4}, 16384, s{sT4}")
    a(f"v_lshrrev_b32 v{t0}, 2, v0")
    a(f"v_lshlrev_b32 v{t0}, 11, v{t0}")
    a(f"v_and_b32 v{t1}, 3, v0")
    a(f"v_lshl_add_u32 v{t0}, v{t1}, 4, v{t0}")
    a(f"s_lshl_b32 s{sT0}, s{sCW}, 6")
    a(f"s_lshl_b32 s{sT1}, s{LW}, 15")
    a(f"s_add_u32 s{sT0}, s{sT0}, s{sT1}")
    a(f"v_add_u32 v{vS}, s{sT0}, v{t0}")
    a(f"s_mov_b32 s{sKT}, 0")
    a(f"s_mul_i32 s{sSA}, s{LW}, 24576")
    a(f"s_mov_b32 s{sT3}, 0")
    a("s_waitcnt lgkmcnt(0)")
    make_srds(a, name, light, L)

    A0 = a
    def issue(fill=None):
        a0 = A0
        fill = list(fill or [])
        per = -(-len(fill) // (NDMA - 2)) if fill else 0
        cnt = [0]
        def a(ln):
            a0(ln)
            if ln.startswith("buffer_load"):
                cnt[0] += 1
                if cnt[0] >= 2:
                    for _ in range(per):
                        if fill: a0(fill.pop(0))
        a(f"s_lshl_b32 s{sOA}, s{sKT}, 7")
        if light: a(f"s_lshl_b32 s{sOB}, s{sKT}, 12")
        else: a(f"s_mul_i32 s{sOB}, s{sKT}, {64*LDW}")
        a(f"s_mov_b32 m0, s{sSB}")
        a(f"s_lshl_b32 s{sOS}, s{sKT}, 17")
        for t in range(1 if light else 4):
            a(f"buffer_load_dwordx4 v{vB+t}, s[{SB}:{SB+3}], s{sOB} offen offset:{t*1024} lds")
        a(f"s_mov_b32 m0, s{sSA}")
        a(f"s_add_u32 s{sKT}, s{sKT}, 1")
        for q in range(4):
            a(f"buffer_load_dwordx4 v{vA+q}, s[{SX}:{SX+3}], s{sOA} offen offset:{q*1024} lds")
        a(f"s_add_u32 m0, s{sSA}, 4096")
        a(f"s_add_u32 s{sT3}, s{sT3}, 1")
        for q in range(4, 8):
            a(f"buffer_load_dwordx4 v{vA+q}, s[{SX}:{SX+3}], s{sOA} offen offset:{(q%4)*1024} lds")
        if light: a(f"s_add_u32 m0, s{sSB}, 16384")
        else: a(f"s_add_u32 m0, s{sSB}, s{sT4}")
        a(f"s_add_u32 s{sSA}, s{sSA}, 8192")
        a(f"buffer_load_dwordx4 v{vS}, s[{SS}:{SS+3}], s{sOS} offen lds")
        a(f"s_cmp_eq_u32 s{sKT}, 16")
        a(f"s_cselect_b32 s{sKT}, 1, s{sKT}")
        a(f"s_add_u32 s{sSB}, s{sSB}, {SLOT_B}")
        a(f"s_cmp_eq_u32 s{sT3}, 3")
        a(f"s_cselect_b32 s{sT0}, 24576, 0")
        a(f"s_cselect_b32 s{sT1}, {3*SLOT_B}, 0")
        a(f"s_cselect_b32 s{sT3}, 0, s{sT3}")
        a(f"s_sub_u32 s{sSA}, s{sSA}, s{sT0}")
        a(f"s_sub_u32 s{sSB}, s{sSB}, s{sT1}")
        for ln in fill: a0(ln)

    issue()
    a(f"s_lshl_b32 s{sKT}, s{sMT}, 1")
    a(f"s_add_u32 s{sKT}, s{sKT}, 1")
    issue()
    a(f"v_bfe_u32 v{t0}, v0, 4, 1")
    a(f"v_and_b32 v{t1}, 3, v0")
    a(f"v_lshlrev_b32 v{t0}, 5, v{t0}")
    a(f"v_lshl_add_u32 v{t0}, v{t1}, 3, v{t0}")
    a(f"v_bfe_u32 v{t2}, v0, 2, 2")
    a(f"v_lshrrev_b32 v{t1}, 5, v0")
    a(f"v_lshl_add_u32 v{t1}, v{t1}, 3, v{t2}")
    a(f"v_lshl_add_u32 v{t3}, v{t1}, 6, v{t0}")
    a(f"s_lshl_b32 s{sT0}, s{LW}, 10")
    a(f"s_add_u32 s{sT0}, s{sT0}, {LDS_B}")
    a(f"v_add_u32 v{vC+1}, s{sT0}, v{t3}")
    if not light:
        a(f"v_lshrrev_b32 v{t2}, 1, v{t2}")
        a(f"s_and_b32 s{sT0}, s{LW}, 1")
        a(f"v_xor_b32 v{t2}, s{sT0}, v{t2}")
        a(f"v_lshlrev_b32 v{t2}, 6, v{t2}")
        a(f"v_xor_b32 v{t2}, v{t2}, v{t0}")
        a(f"v_lshl_add_u32 v{t2}, v{t1}, 7, v{t2}")
        a(f"s_lshr_b32 s{sT0}, s{LW}, 1")
        a(f"s_lshl_b32 s{sT0}, s{sT0}, 13")
        a(f"s_add_u32 s{sT0}, s{sT0}, {LDS_B}")
        a(f"v_add_u32 v{vC}, s{sT0}, v{t2}")
    for i in range(8):
        a(f"v_mov_b32 v{vCB+i}, 0")
    a(f"s_mov_b32 s{sCSL}, 0")
    if light:
        a(f"s_cmp_eq_u32 s{sCW}, 31")
        a(f"s_cselect_b32 s{sWI}, 2, 0")
    else:
        a(f"s_cmp_eq_u32 s{LW}, 0")
        a(f"s_cselect_b32 s{sWI}, {(1 << 5) | (1 << 14)}, 0")
    a(f"v_lshlrev_b32 v81, 2, v0")
    a(f"v_cmp_gt_u32 vcc, 32, v0")
    a("s_nop 1")
    a(f"v_cndmask_b32 v84, 0, 1, vcc")
    a(f"s_waitcnt vmcnt({NDMA})")
    ST.mark(a, 1)
    a("s_barrier")

    def cs_read():
        if light:
            rds = [(vC + 1, j * 256) for j in range(2)]
        else:
            rds = [(vC, (i // 2) * 2048 + (i % 2) * 512) for i in range(8)]
        rds += [(vC + 1, 16384 + j * 256) for j in range(2)]
        for i, (r, off) in enumerate(rds):
            a(f"ds_read_b64_tr_b16 v[{vD+2*i}:{vD+2*i+1}], v{r} offset:{off}")
        a(f"s_add_u32 s{sCSL}, s{sCSL}, 1")
        a(f"s_cmp_eq_u32 s{sCSL}, 3")
        a(f"s_cselect_b32 s{sT0}, {3*SLOT_B}, 0")
        a(f"s_cselect_b32 s{sCSL}, 0, s{sCSL}")
        a(f"s_sub_u32 s{sT0}, {SLOT_B}, s{sT0}")
        if not light: a(f"v_add_u32 v{vC}, s{sT0}, v{vC}")
        a(f"v_add_u32 v{vC+1}, s{sT0}, v{vC+1}")
    def cs_add(lst=False):
        o = []
        a = o.append
        a("s_waitcnt lgkmcnt(0)")
        U = 104
        for g in range(0, 2 * NRD, 4):
            for k in range(4):
                a(f"v_lshlrev_b32 v{U+k}, 16, v{vD+g+k}")
            for k in range(4):
                a(f"v_and_b32 v{vD+g+k}, 0xffff0000, v{vD+g+k}")
            b = vCB if g < 2 * NRD - 4 else vCB + 4
            for k in range(4):
                a(f"v_add_f32 v{b+k}, v{b+k}, v{U+k}")
            for k in range(4):
                a(f"v_add_f32 v{b+k}, v{b+k}, v{vD+g+k}")
        if lst: return o
        for ln in o: A0(ln)

    vX, vP = 64, 80
    a(f"s_mov_b32 s{sPH}, 0")
    a.label(f"{L}_loop")
    cs_read()
    a(f"s_bitcmp1_b32 s{sWI}, s{sPH}")
    a(f"s_cbranch_scc1 {L}_sp")
    a.label(f"{L}_spret")
    a(f"s_cmp_lt_u32 s{sPH}, 14")
    a(f"s_cbranch_scc0 {L}_noiss")
    issue(cs_add(True))
    a(f"s_waitcnt vmcnt({NDMA}) lgkmcnt(0)")
    a("s_barrier")
    a(f"s_add_u32 s{sPH}, s{sPH}, 1")
    a(f"s_branch {L}_loop")
    a.label(f"{L}_noiss")
    if not light:
        a(f"s_cmp_eq_u32 s{sPH}, 15")
        a(f"s_cbranch_scc1 {name}_att_early")
        a.label(f"{name}_att_early_ret")
    cs_add()
    a(f"s_cmp_eq_u32 s{sPH}, 15")
    a(f"s_cbranch_scc1 {name}_ld_fin")
    a("s_waitcnt vmcnt(0)")
    if not light:
        a(f"s_cmp_eq_u32 s{LW}, 0")
        a(f"s_cbranch_scc1 {L}_n10")
        a.label(f"{L}_ckret")
    a("s_barrier")
    a(f"s_add_u32 s{sPH}, s{sPH}, 1")
    a(f"s_branch {L}_loop")
    if not light:
        a.label(f"{name}_ld_fin")
        for i in range(4):
            a(f"v_add_f32 v{vCA+i}, v{vCB+2*i}, v{vCB+2*i+1}")
        a(f"v_add_f32 v{vCA}, v{vCA}, v{vCA+1}")
        a(f"v_add_f32 v{vCA+2}, v{vCA+2}, v{vCA+3}")
        a(f"v_mov_b32 v{vCA+1}, v{vCA}")
        a(f"v_mov_b32 v{vCA+3}, v{vCA+2}")
        a(f"v_and_b32 v{t1}, 31, v0")
        a(f"s_lshl_b32 s{sT0}, s{LW}, 7")
        a(f"v_permlane32_swap_b32 v{vCA}, v{vCA+1}")
        a(f"v_permlane32_swap_b32 v{vCA+2}, v{vCA+3}")
        a(f"s_add_u32 s{sT0}, s{sT0}, {LDS_M}")
        a(f"v_lshlrev_b32 v{t1}, 2, v{t1}")
        a(f"v_add_u32 v{t1}, s{sT0}, v{t1}")
        a(f"v_add_f32 v{vCA}, v{vCA}, v{vCA+1}")
        a(f"v_add_f32 v{vCA+2}, v{vCA+2}, v{vCA+3}")
        a(f"ds_write_b32 v{t1}, v{vCA}")
        a(f"ds_write_b32 v{t1}, v{vCA+2} offset:512")
        a(f"v_mov_b32 v{t0}, 0")
        a(f"ds_write_b32 v{t1}, v{t0} offset:2048")
        a("s_waitcnt lgkmcnt(0)")
        a("s_barrier")
        a(f"s_branch {name}_att")
    a.label(f"{L}_sp")
    if light:
        a(f"s_lshl_b32 s{sT0}, s{sMT}, 2")
        a(f"s_add_u32 s{sT0}, s{sT0}, s{LW}")
        a(f"s_lshl_b32 s{sT0}, s{sT0}, 10")
        a(f"s_add_u32 s{sT0}, s{sT0}, {FL_OFF}")
        a(f"v_lshlrev_b32 v{t2}, 4, v0")
        for i in range(4): a(f"v_mov_b32 v{vX+i}, 0")
        a(f"buffer_store_dwordx4 v[{vX}:{vX+3}], v{t2}, s[{SW}:{SW+3}], s{sT0} offen sc1")
        a(f"s_branch {L}_spret")
        return
    a(f"s_cmp_eq_u32 s{sPH}, 5")
    a(f"s_cbranch_scc0 {L}_n4")
    a(f"s_lshl_b32 s{sT0}, s{sCW}, 8")
    a(f"v_lshlrev_b32 v{t1}, 3, v0")
    a(f"buffer_load_dwordx2 v[{vX}:{vX+1}], v{t1}, s[{SB1}:{SB1+3}], s{sT0} offen")
    a(f"s_branch {L}_spret")
    a.label(f"{L}_n4")
    a(f"buffer_load_dword v{vP+2}, v{vP+1}, s[{SD}:{SD+3}], 0 offen sc1")
    a(f"v_lshlrev_b32 v{vX+4}, 16, v{vX}")
    a(f"v_and_b32 v{vX+5}, 0xffff0000, v{vX}")
    a(f"v_lshlrev_b32 v{vX+6}, 16, v{vX+1}")
    a(f"v_and_b32 v{vX+7}, 0xffff0000, v{vX+1}")
    a(f"v_lshlrev_b32 v{t0}, 4, v0")
    a(f"v_add_u32 v{t0}, {LDS_M}, v{t0}")
    a(f"ds_write_b128 v{t0}, v[{vX+4}:{vX+7}] offset:1024")
    a(f"s_branch {L}_spret")
    a.label(f"{L}_n10")
    a(f"s_mov_b32 s{sT2}, 0")
    a.label(f"{L}_poll")
    a(f"v_and_b32 v{vP+2}, v84, v{vP+2}")
    a(f"v_cmp_ne_u32 vcc, v84, v{vP+2}")
    a("s_nop 1")
    a(f"s_cbranch_vccz {L}_ckret")
    a(f"s_cmp_eq_u32 s{sT2}, 0")
    a(f"s_cbranch_scc1 {L}_ns")
    a("s_sleep 16")
    a.label(f"{L}_ns")
    a(f"buffer_load_dword v{vP+2}, v{vP+1}, s[{SD}:{SD+3}], 0 offen sc1")
    a("s_waitcnt vmcnt(0)")
    a(f"s_add_u32 s{sT2}, s{sT2}, 1")
    a(f"s_cmp_lt_u32 s{sT2}, 0x40000")
    a(f"s_cbranch_scc1 {L}_poll")
    a(f"s_branch {L}_ckret")

def make_srds(a, name, light, L):
    srd(a, SX, 8, 4194304)
    if light:
        a(f"s_cmp_eq_u32 s{sTYPE}, 2")
        a(f"s_cselect_b32 s{SB}, s14, s12")
        a(f"s_cselect_b32 s{SB+1}, s15, s13")
        a(f"s_mov_b32 s{SB+2}, 65536")
        a(f"s_mov_b32 s{SB+3}, 0x20000")
    else:
        srd(a, SB, 16, 7340032)
    srd(a, SS, 10, 2097152)
    srd(a, SW, 22, WS_USED)
    srd(a, SB1, 18, 7168)
    srd(a, SD, 20, 256)

ACC = 96
vAA = 2
vBA = 6
vSA = 8
vBF = 12
vAF = 32

TOP = None
def gen_compute(a, name, stflag):
    global TOP
    TOP = name
    t0, t1, t2, t3 = 48, 49, 50, 51
    W = sWAVE
    a(f"v_and_b32 v{t0}, 31, v0")
    a(f"v_lshrrev_b32 v{t1}, 5, v0")
    a(f"v_bfe_u32 v{t2}, v0, 1, 3")
    a(f"v_xor_b32 v{t2}, v{t2}, v{t1}")
    a(f"v_lshlrev_b32 v{t2}, 4, v{t2}")
    a(f"v_lshl_add_u32 v{t2}, v{t0}, 7, v{t2}")
    a(f"s_mul_i32 s{sT0}, s{W}, 24576")
    for st in range(4):
        a(f"v_xor_b32 v{vAA+st}, {st*32}, v{t2}")
        a(f"v_add_u32 v{vAA+st}, s{sT0}, v{vAA+st}")
    a(f"v_bfe_u32 v{t0}, v0, 4, 1")
    a(f"v_and_b32 v{t2}, 3, v0")
    a(f"v_lshlrev_b32 v{t0}, 5, v{t0}")
    a(f"v_lshl_add_u32 v{t0}, v{t2}, 3, v{t0}")
    a(f"v_bfe_u32 v{t2}, v0, 2, 2")
    a(f"v_lshl_add_u32 v{t1}, v{t1}, 3, v{t2}")
    a(f"v_bfe_u32 v{t3}, v0, 3, 1")
    a(f"v_lshlrev_b32 v{t3}, 6, v{t3}")
    a(f"v_xor_b32 v{t3}, v{t3}, v{t0}")
    a(f"v_lshl_add_u32 v{t3}, v{t1}, 7, v{t3}")
    a(f"v_add_u32 v{vBA}, {LDS_B}, v{t3}")
    a(f"v_xor_b32 v{vBA+1}, 64, v{vBA}")
    a(f"v_lshl_add_u32 v{t3}, v{t1}, 6, v{t0}")
    a(f"v_add_u32 v{vSA}, {LDS_B}, v{t3}")
    a(f"s_getpc_b64 s[72:73]")
    a.label(f"{name}_pc")
    a(f"s_sub_u32 s72, s72, {name}_pc-code_begin")
    a(f"s_subb_u32 s73, s73, 0")
    a(f"s_lshr_b32 s{sT0}, s2, 3")
    a(f"s_and_b32 s{sT0}, s{sT0}, 7")
    a(f"s_lshl_b32 s{sT0}, s{sT0}, 2")
    a(f"s_add_u32 s{sT0}, s{sT0}, s{W}")
    a(f"s_lshl_b32 s{sT0}, s{sT0}, 11")
    a(f"v_and_b32 v{t0}, 31, v0")
    a(f"v_lshlrev_b32 v{t0}, 6, v{t0}")
    a(f"v_add_u32 v{t0}, s{sT0}, v{t0}")
    a(f"v_min_u32 v11, code_end-code_begin-4, v{t0}")
    a(f"global_load_dword v{t1}, v11, s[72:73]")
    for r in range(ACC, 256):
        a(f"v_mov_b32 v{r}, 0")
    a(f"s_cmp_eq_u32 s{sTYPE}, 1")
    a(f"s_cbranch_scc1 {name}_cq")
    a(f"s_cmp_eq_u32 s{sTYPE}, 2")
    a(f"s_cbranch_scc1 {name}_ckv")
    QB = ("Q", "s", 16384, [0, 1])
    HQ = [("H", "m0", 0, [0, 1]), ("H", "m1", 0, [0, 1]), ("H", "m0", 8192, [0, 1]), ("H", "m1", 8192, [0, 1]), QB]
    KQ = [("K", "s", 0, [0]), None, None, None, QB]
    VQ = [("V", "s", 0, [0]), None, None, None, QB]
    gen_variant(a, name + "_h", HQ, stflag)
    a.label(f"{name}_cq")
    gen_variant(a, name + "_k", KQ, stflag)
    a.label(f"{name}_ckv")
    gen_variant(a, name + "_v", VQ, stflag)

def pf(a, ptr, base, nbytes, dst, va=48):
    G = 128 if 'g128' in EXP else 64
    a(f"s_mul_i32 s{sT0}, s{sWI}, {nbytes}")
    if base: a(f"s_add_u32 s{sT0}, s{sT0}, {base}")
    n = 0
    for o in range(0, nbytes, 64 * G):
        a(f"v_lshlrev_b32 v{va}, {7 if G == 128 else 6}, v0")
        if o: a(f"v_add_u32 v{va}, {o}, v{va}")
        a(f"v_min_u32 v{va}, {nbytes - 64}, v{va}")
        a(f"v_add_u32 v{va}, s{sT0}, v{va}")
        a(f"global_load_dword v{dst}, v{va}, s[{ptr}:{ptr+1}]")
        n += 1
    return n

def acc(nb, ps):
    return ACC + (nb * 2 + ps) * 16

def gen_variant(a, name, spec, stflag):
    blocks = [nb for nb in range(5) if spec[nb] is not None]
    mf = [(nb, ps) for nb in blocks for ps in spec[nb][3]]
    light = spec[0][0] != "H"
    vST, vONE = 84, 92
    if light:
        for i in range(8): a(f"v_mov_b32 v{vST+i}, 0")
        a(f"v_mov_b32 v{vONE}, 0x3f803f80")

    def rdB(nb, slot, st):
        kind, fmt, off, _ = spec[nb]
        o = []
        for j in range(2):
            if fmt == "s":
                o.append((f"ds_read_b64_tr_b16 v[{vBF+4*nb+2*j}:{vBF+4*nb+2*j+1}], v{vSA} offset:{slot*SLOT_B + off + st*1024 + j*256}", ("B", nb, j)))
            else:
                o.append((f"ds_read_b64_tr_b16 v[{vBF+4*nb+2*j}:{vBF+4*nb+2*j+1}], v{vBA + int(fmt[1])} offset:{slot*SLOT_B + off + st*2048 + j*512}", ("B", nb, j)))
        return o
    def rdA(slot, st):
        buf = st % 2
        return [(f"ds_read_b128 v[{vAF+buf*8+ps*4}:{vAF+buf*8+ps*4+3}], v{vAA+st} offset:{slot*8192 + ps*4096}", ("A", buf, ps)) for ps in range(2)]

    def tile(out, q, slot, last, extra=None):
        for st in range(4):
            nslot, nst = (slot, st + 1) if st < 3 else ((slot + 1) % 3, 0)
            nxt = not (last and st == 3)
            pend = []
            if nxt:
                pend += rdA(nslot, nst)
            hold = min(BAR_AT, len(mf) - 1) if st == 3 else 0
            for mi, (nb, ps) in enumerate(mf):
                tags = []
                for (nb2, ps2) in mf[mi:mi + 2]:
                    tags += [("B", nb2, 0), ("B", nb2, 1), ("A", st % 2, ps2)]
                own = [("B", nb, 0), ("B", nb, 1), ("A", st % 2, ps)]
                probe = Q("p", 15); probe.issued = list(q.issued); probe.done = q.done
                if probe.need(own) is not None:
                    n = q.need(tags)
                    out.append(f"s_waitcnt lgkmcnt({n})")
                A_ = v(vAF + (st % 2) * 8 + ps * 4, 4)
                B_ = v(vBF + 4 * nb, 4)
                c = v(acc(nb, ps), 16)
                if spec[nb][0] == "V":
                    out.append(f"v_mfma_f32_32x32x16_bf16 {c}, {A_}, {B_}, {c}")
                else:
                    out.append(f"v_mfma_f32_32x32x16_bf16 {c}, {B_}, {A_}, {c}")
                if nxt and (mi + 1 == len(mf) or mf[mi + 1][0] != nb):
                    pend += rdB(nb, nslot, nst)
                if st == 3 and nxt and mi + 1 == hold:
                    out.append("s_waitcnt lgkmcnt(0)")
                    q.drain()
                    out.append("s_barrier")
                if mi + 1 >= hold:
                    k = 0
                    while pend and (k < 3 or mi + 1 == len(mf)):
                        ins, tag = pend.pop(0)
                        out.append(ins); q.issue(tag); k += 1
                if light and mi + 1 == len(mf):
                    for e in range(4):
                        r_ = vAF + (st % 2) * 8 + e
                        out.append(f"v_dot2c_f32_bf16 v{vST + e % 2}, v{r_}, v{vONE}")
                        out.append(f"v_dot2c_f32_bf16 v{vST + 2 + e % 2}, v{r_}, v{r_}")
                if extra and (st, mi) in extra:
                    out += extra[(st, mi)]
            assert not pend, pend

    BAR_AT = BARAT
    XP = os.environ.get("XP", "b")
    if XP in "ab":
        a(f"s_lshl_b32 s{sT0}, s2, 2")
        a(f"s_add_u32 s{sT0}, s{sT0}, s{sWAVE}")
        a(f"s_lshl_b32 s{sT0}, s{sT0}, 12")
        a(f"v_and_b32 v48, 31, v0")
        a(f"v_lshlrev_b32 v48, 7, v48")
    a("s_barrier")
    if XP == "a": a(f"buffer_load_dword v49, v48, s[{SX}:{SX+3}], s{sT0} offen")
    ST.mark(a, 1)
    q = Q("lgkm", 15)
    for ins, tag in rdA(0, 0) + sum((rdB(nb, 0, 0) for nb in blocks), []):
        a(ins)
    a("s_waitcnt lgkmcnt(0)")
    dummy = []
    tile(dummy, q, 2, False)
    body = []
    for slot in range(3):
        tile(body, q, slot, False)
    a(f"s_mov_b32 s{sPH}, 5")
    a(".p2align 6")
    a.label(f"{name}_loop")
    if XP == "b":
        a(f"s_cmp_eq_u32 s{sPH}, 4")
        a(f"s_cbranch_scc0 {name}_nxp")
        a(f"buffer_load_dword v49, v48, s[{SX}:{SX+3}], s{sT0} offen")
        a.label(f"{name}_nxp")
    for ln in body: a(ln)
    a(f"s_sub_u32 s{sPH}, s{sPH}, 1")
    if 'stl' in EXP and ST.on:
        for it in range(5):
            a(f"s_cmp_lg_u32 s{sPH}, {it}")
            a(f"s_cbranch_scc1 {name}_stl{it}")
            ST.mark(a, 6 - it, True)
            a.label(f"{name}_stl{it}")
    a(f"s_cmp_lg_u32 s{sPH}, 0")
    a(f"s_cbranch_scc1 {name}_loop")
    isH = spec[0][0] == "H"
    hasV = spec[0][0] == "V"
    vR = 48
    vRow, vO, vT = 9, 64, 66
    pre = [f"s_lshl_b32 s{sT0}, s{sMT}, 8", f"s_lshl_b32 s{sT1}, s{sWAVE}, 6", f"s_add_u32 s{sT0}, s{sT0}, s{sT1}",
           f"s_lshl_b32 s{sT0}, s{sT0}, 2", f"s_add_u32 s{sT0}, s{sT0}, {RS_OFF}", f"s_add_u32 s{sT1}, s{sT0}, 8192",
           f"s_add_u32 s{sT2}, s{sT0}, 16384", f"s_add_u32 s{sT3}, s{sT0}, 24576",
           f"v_and_b32 v{vRow}, 31, v0", f"v_lshlrev_b32 v{vRow}, 2, v{vRow}"]
    lds_ = []
    for ps in range(2):
        for k in range(4):
            lds_.append(f"buffer_load_dword v{vR+8*ps+2*k}, v{vRow}, s[{SW}:{SW+3}], s{sT0+k} offen offset:{ps*128} sc1")
    vVS = [acc(1, 0), acc(2, 0)]
    lds_.append("global_load_dword v67, v11, s[72:73]")
    extra = {}
    if isH:
        for ln in pre: a(ln)
        pos = [(0, 1), (0, 2), (0, 3), (0, 4), (0, 5), (0, 6), (0, 7), (0, 8), (2, 0)]
        for p_, ln in zip(pos, lds_): extra[p_] = [ln]
    last = []
    tile(last, q, 0, True, extra)
    for ln in last: a(ln)

    ST.mark(a, 2)
    if light:
        def rbf(r):
            a(f"v_cvt_pk_bf16_f32 v{r}, v{r}, v{r}")
            a(f"v_and_b32 v{r}, 0xffff0000, v{r}")
        a("s_nop 2")
        for ps in range(1):
            b = vST + 4 * ps
            mean, var, t0, t1 = b, b + 2, b + 1, b + 3
            a(f"v_add_f32 v{b}, v{b}, v{b+1}")
            a(f"v_add_f32 v{b+2}, v{b+2}, v{b+3}")
            a(f"v_mov_b32 v{b+1}, v{b}")
            a(f"v_mov_b32 v{b+3}, v{b+2}")
            a("s_nop 1")
            a(f"v_permlane32_swap_b32 v{b}, v{b+1}")
            a(f"v_permlane32_swap_b32 v{b+2}, v{b+3}")
            a("s_nop 1")
            a(f"v_add_f32 v{b}, v{b}, v{b+1}")
            a(f"v_add_f32 v{b+2}, v{b+2}, v{b+3}")
            a(f"v_mul_f32 v{mean}, {f32(1.0/1024)}, v{mean}")
            a(f"v_mul_f32 v{var}, {f32(1.0/1024)}, v{var}")
            a(f"v_fma_f32 v{var}, -v{mean}, v{mean}, v{var}")
            a(f"v_max_f32 v{var}, 0, v{var}")
            r_v, nrm, rs_v, nrsm = vR + 8 * ps, vR + 8 * ps + 2, vR + 8 * ps + 4, vR + 8 * ps + 6
            a(f"v_mov_b32 v{nrm}, v{mean}")
            rbf(nrm)
            a(f"v_mov_b32 v{t0}, v{var}")
            rbf(t0)
            a(f"v_add_f32 v{t0}, {f32(1e-5)}, v{t0}")
            rbf(t0)
            a(f"v_sqrt_f32 v{t0}, v{t0}")
            a("s_nop 0")
            rbf(t0)
            a(f"v_rcp_f32 v{r_v}, v{t0}")
            a("s_nop 0")
            a(f"v_mul_f32 v{t1}, v{r_v}, v{r_v}")
            a(f"v_mul_f32 v{t1}, v{t1}, v{var}")
            rbf(t1)
            a(f"v_add_f32 v{t1}, {f32(1e-5)}, v{t1}")
            rbf(t1)
            a(f"v_sqrt_f32 v{t1}, v{t1}")
            a("s_nop 0")
            rbf(t1)
            a(f"v_rcp_f32 v{t1}, v{t1}")
            a("s_nop 0")
            a(f"v_mul_f32 v{rs_v}, v{r_v}, v{t1}")
            a(f"v_mul_f32 v{nrm}, -v{nrm}, v{r_v}")
            a(f"v_mul_f32 v{nrsm}, -v{mean}, v{rs_v}")
        for ln in pre: a(ln)
        a(f"s_mov_b32 s{sKT}, s{sT0}")
        a(f"s_lshl_b32 s{sT4}, s{sFLIP}, 7")
        a(f"v_add_u32 v{vRow}, s{sT4}, v{vRow}")
        if not hasV:
            for k in range(4):
                a(f"buffer_store_dword v{vR+2*k}, v{vRow}, s[{SW}:{SW+3}], s{sT0+k} offen sc1")
    a(f"s_and_b32 s{sT0}, s{sWAVE}, 1")
    a(f"s_lshl_b32 s{sT0}, s{sT0}, 11")
    a(f"v_lshlrev_b32 v{vO+1}, 4, v0")
    a(f"v_add_u32 v{vO}, s{sT0}, v{vO+1}")
    a(f"s_lshr_b32 s{sT0}, s{sWAVE}, 1")
    a(f"s_lshl_b32 s{sT1}, s{sMT}, 1")
    a(f"s_add_u32 s{sOB}, s{sT0}, s{sT1}")
    a(f"s_mul_i32 s{sOA}, s{sOB}, {A2_MT}")
    a(f"s_lshl_b32 s{sT1}, s{sCBM}, 13")
    a(f"s_add_u32 s{sOA}, s{sOA}, s{sT1}")
    a(f"s_add_u32 s{sOA}, s{sOA}, {A2_OFF + 64*4096}")
    a(f"v_lshrrev_b32 v{vT}, 5, v0")
    a(f"v_lshlrev_b32 v{vT}, 4, v{vT}")
    a(f"v_add_u32 v{vT}, {LDS_M}, v{vT}")
    vCS = [12, 68]
    vBI = [28, 224]
    vK0, vK1 = 44, 46
    def P(r): return v(r, 2)
    def rdtab(nb, buf, bias):
        for g in range(4):
            a(f"ds_read_b128 v[{vCS[buf]+4*g}:{vCS[buf]+4*g+3}], v{vT} offset:{nb*128 + g*32}")
        if bias:
            for g in range(4):
                a(f"ds_read_b128 v[{vBI[buf]+4*g}:{vBI[buf]+4*g+3}], v{vT} offset:{1024 + nb*128 + g*32}")
    a("s_barrier")
    a("s_setprio 3")
    def qblock():
        tmp = [12, 28, 68, 84 - 0]
        for p_ in range(3):
            for g in range(4):
                a(f"ds_read_b128 v[{tmp[p_]+4*g}:{tmp[p_]+4*g+3}], v{vT} offset:{(4+p_)*128 + g*32}")
        a(f"s_lshl_b32 s{sT0}, s{sWAVE}, 12")
        a(f"s_add_u32 s{sT0}, s{sT0}, {LDS_QX}")
        if light:
            a(f"s_lshl_b32 s{sT1}, s{sFLIP}, 11")
            a(f"s_add_u32 s{sT0}, s{sT0}, s{sT1}")
        a(f"v_add_u32 v8, s{sT0}, v{vO+1}")
        a(f"v_xor_b32 v10, 0x800, v8")
        a(f"s_waitcnt vmcnt({1 if isH else 0}) lgkmcnt(4)")
        for ps in range(2):
            a(f"v_mul_f32 v{vR+8*ps+1}, {f32(QSCALE)}, v{vR+8*ps}")
            a(f"v_mul_f32 v{vR+8*ps+3}, {f32(QSCALE)}, v{vR+8*ps+2}")
        for e in range(0, 16, 2): a(f"v_pk_add_f32 {P(12+e)}, {P(12+e)}, {P(28+e)}")
        for g in range(4):
            a(f"ds_read_b128 v[{28+4*g}:{28+4*g+3}], v{vT} offset:{7*128 + g*32}")
        a("s_waitcnt lgkmcnt(4)")
        for e in range(0, 16, 2): a(f"v_pk_add_f32 {P(12+e)}, {P(12+e)}, {P(68+e)}")
        for ps in range(2):
            c = acc(4, ps)
            for e in range(0, 16, 2):
                a(f"v_pk_mul_f32 {P(c+e)}, {P(c+e)}, {P(vR+8*ps)} op_sel:[0,1] op_sel_hi:[1,1]")
        a("s_waitcnt lgkmcnt(0)")
        for e in range(0, 16, 2): a(f"v_pk_add_f32 {P(12+e)}, {P(12+e)}, {P(28+e)}")
        for g in range(4):
            a(f"ds_read_b128 v[{vCS[1]+4*g}:{vCS[1]+4*g+3}], v{vT} offset:{g*32}")
        for ps in range(2):
            c = acc(4, ps)
            for e in range(0, 16, 2):
                a(f"v_pk_fma_f32 {P(c+e)}, {P(12+e)}, {P(vR+8*ps+2)}, {P(c+e)} op_sel:[0,1,0] op_sel_hi:[1,1,1]")
            for i in range(8):
                a(f"v_cvt_pk_bf16_f32 v{84+i}, v{c+2*i}, v{c+2*i+1}")
            for f in range(2):
                a(f"ds_write_b128 v{8 if ps == 0 else 10}, v[{84+4*f}:{84+4*f+3}] offset:{f*1024}")
        a(f"s_lshl_b32 s{sT0}, s{sWAVE}, 7")
        a(f"s_add_u32 s{sT0}, s{sT0}, {LDS_M + 2048 + 16}")
        a(f"v_mov_b32 v2, s{sT0}")
        a("v_mov_b32 v3, 1")
        a("ds_write_b32 v2, v3")
    if isH: qblock()
    deferred = []
    if isH:
        for g in range(4):
            a(f"ds_read_b128 v[{vBI[1]+4*g}:{vBI[1]+4*g+3}], v{vT} offset:{1024 + g*32}")
        a(f"v_mov_b32 v{vK0}, {f32(G_C0)}")
        a(f"v_mov_b32 v{vK1}, {f32(G_C1)}")
        for nb in range(4):
            buf = (nb + 1) % 2
            if nb < 3:
                rdtab(nb + 1, 1 - buf, True)
                a("s_waitcnt lgkmcnt(8)")
            else:
                a("s_waitcnt lgkmcnt(0)")
            for ps in range(2):
                c = acc(nb, ps)
                sc_ = "op_sel:[0,0,0] op_sel_hi:[1,0,1]"
                for half in range(2):
                    T = [2, 4, 6, 8]
                    idx = [half * 8 + 2 * i for i in range(4)]
                    for i, e in enumerate(idx):
                        a(f"v_pk_fma_f32 {P(T[i])}, {P(vCS[buf]+e)}, {P(vR+8*ps+6)}, {P(vBI[buf]+e)} {sc_}")
                    for i, e in enumerate(idx):
                        a(f"v_pk_fma_f32 {P(c+e)}, {P(c+e)}, {P(vR+8*ps+4)}, {P(T[i])} {sc_}")
                    for i, e in enumerate(idx):
                        a(f"v_pk_mul_f32 {P(T[i])}, {P(c+e)}, {P(c+e)}")
                    for i, e in enumerate(idx):
                        a(f"v_pk_fma_f32 {P(T[i])}, {P(T[i])}, {P(vK1)}, {P(vK0)} op_sel:[0,0,0] op_sel_hi:[1,0,0]")
                    for i, e in enumerate(idx):
                        a(f"v_pk_mul_f32 {P(T[i])}, {P(T[i])}, {P(c+e)}")
                    for i in range(8):
                        a(f"v_exp_f32 v{2+i}, v{2+i}")
                    for i, e in enumerate(idx):
                        a(f"v_pk_add_f32 {P(T[i])}, {P(T[i])}, 1.0 op_sel_hi:[1,0]")
                    for i in range(8):
                        a(f"v_rcp_f32 v{2+i}, v{2+i}")
                    for i, e in enumerate(idx):
                        a(f"v_pk_mul_f32 {P(c+e)}, {P(c+e)}, {P(T[i])}")
                    for i, e in enumerate(idx):
                        a(f"v_cvt_pk_bf16_f32 v{c+half*8+i}, v{c+e}, v{c+e+1}")
                    a(f"s_add_u32 s{sT0}, s{sOA}, {nb*8192 + half*4096}")
                    a(f"buffer_store_dwordx4 v[{c+half*8}:{c+half*8+3}], v{vO}, s[{SW}:{SW+3}], s{sT0} offen offset:{ps*1024} {stflag}")
        a(f"s_lshl_b32 s{sT0}, s{sOB}, 2")
        a(f"s_and_b32 s{sT1}, s{sCW}, 3")
        a(f"s_add_u32 s{sT0}, s{sT0}, s{sT1}")
        a(f"s_mul_i32 s{sT3}, s{sT0}, {FLS}")
        a(f"s_add_u32 s{sT3}, s{sT3}, {FL_OFF + FL_H*FLS}")
        a("v_mov_b32 v2, 1")
        a("v_lshlrev_b32 v3, 24, v0")
        ST.mark(a, 3)
        a("s_waitcnt vmcnt(0)")
        a(f"buffer_atomic_add v2, v3, s[{SW}:{SW+3}], s{sT3} offen sc1")
    else:
        c = acc(0, 0)
        if hasV:
            a(f"s_lshl_b32 s{sT0}, s{sWAVE}, 9")
            a(f"s_add_u32 s{sT0}, s{sT0}, 65536")
            a(f"v_and_b32 v2, 31, v0")
            a(f"v_lshlrev_b32 v2, 2, v2")
            a(f"v_add_u32 v3, s{sT0}, v2")
            a(f"ds_write_b32 v3, v{vR}")
            a(f"ds_write_b32 v3, v{vR+2} offset:128")
            a(f"v_add_u32 v2, {LDS_M}, v2")
            for p_ in range(4): a(f"ds_read_b32 v{4+p_}, v2 offset:{p_*128}")
            a(f"v_lshrrev_b32 v3, 5, v0")
            a(f"v_lshlrev_b32 v3, 4, v3")
            a(f"v_add_u32 v3, s{sT0}, v3")
            for k in range(2):
                for g in range(4):
                    a(f"ds_read_b128 v[{vVS[0]+16*k+4*g}:{vVS[0]+16*k+4*g+3}], v3 offset:{k*128 + g*32}")
            a("s_waitcnt lgkmcnt(0)")
            a("v_add_f32 v4, v4, v5")
            a("v_add_f32 v6, v6, v7")
            for e in range(0, 16, 2): a(f"v_pk_mul_f32 {P(c+e)}, {P(c+e)}, {P(vVS[0]+e)}")
            a("v_add_f32 v4, v4, v6")
            for e in range(0, 16, 2): a(f"v_pk_fma_f32 {P(c+e)}, {P(vVS[0]+16+e)}, {P(4)}, {P(c+e)} op_sel:[0,0,0] op_sel_hi:[1,0,1]")
        else:
            tb = [acc(1, 0), acc(1, 1), acc(2, 0), acc(2, 1)]
            for p_ in range(4):
                for g in range(4):
                    a(f"ds_read_b128 v[{tb[p_]+4*g}:{tb[p_]+4*g+3}], v{vT} offset:{p_*128 + g*32}")
                if p_ == 2: a("s_waitcnt lgkmcnt(4)")
            for e in range(0, 16, 2): a(f"v_pk_mul_f32 {P(c+e)}, {P(c+e)}, {P(vR)} op_sel:[0,0] op_sel_hi:[1,0]")
            for e in range(0, 16, 2): a(f"v_pk_add_f32 {P(tb[0]+e)}, {P(tb[0]+e)}, {P(tb[1]+e)}")
            a("s_waitcnt lgkmcnt(0)")
            for e in range(0, 16, 2): a(f"v_pk_add_f32 {P(tb[2]+e)}, {P(tb[2]+e)}, {P(tb[3]+e)}")
            for e in range(0, 16, 2): a(f"v_pk_add_f32 {P(tb[0]+e)}, {P(tb[0]+e)}, {P(tb[2]+e)}")
            for e in range(0, 16, 2): a(f"v_pk_fma_f32 {P(c+e)}, {P(tb[0]+e)}, {P(vR+2)}, {P(c+e)} op_sel:[0,0,0] op_sel_hi:[1,0,1]")
        a(f"s_lshl_b32 s{sT0}, s{sMT}, 3")
        a(f"s_lshl_b32 s{sT1}, s{sWAVE}, 1")
        a(f"s_add_u32 s{sT0}, s{sT0}, s{sT1}")
        a(f"s_add_u32 s{sT0}, s{sT0}, s{sFLIP}")
        a(f"s_lshl_b32 s{sT0}, s{sT0}, 12")
        a(f"s_add_u32 s{sT0}, s{sT0}, {KV_OFF + (2048 if hasV else 0)}")
        for i in range(8):
            a(f"v_cvt_pk_bf16_f32 v{c+i}, v{c+2*i}, v{c+2*i+1}")
        for f in range(2):
            a(f"buffer_store_dwordx4 v[{c+4*f}:{c+4*f+3}], v{vO+1}, s[{SW}:{SW+3}], s{sT0} offen offset:{f*1024} {stflag}")
        a(f"v_mov_b32 v4, {LDS_M + 2048 + 20}")
        a("v_mov_b32 v2, 1")
        a(f"v_lshlrev_b32 v3, 8, v0")
        a(f"s_sub_u32 s{sT1}, s2, 224")
        a(f"s_lshl_b32 s{sT1}, s{sT1}, 2")
        a("s_mov_b64 exec, 1")
        a("s_waitcnt vmcnt(0)")
        a("ds_add_rtn_u32 v5, v4, v2")
        a("s_waitcnt lgkmcnt(0)")
        a(f"v_readfirstlane_b32 s{sT0}, v5")
        a("s_mov_b64 exec, -1")
        a(f"s_cmp_eq_u32 s{sT0}, 3")
        a(f"s_cbranch_scc0 {name}_nosig")
        a(f"buffer_atomic_add v2, v3, s[{SD}:{SD+3}], s{sT1} offen sc1")
        a.label(f"{name}_nosig")
        ST.mark(a, 3)
        a(f"s_lshl_b32 s{sT0}, s{sMT}, 2")
        a(f"s_add_u32 s{sT0}, s{sT0}, s{sCW}")
        a(f"s_sub_u32 s{sT0}, s{sT0}, 28")
        a(f"s_lshl_b32 s{sT0}, s{sT0}, 2")
        a(f"s_add_u32 s{sT0}, s{sT0}, s{sWAVE}")
        a(f"s_mul_i32 s{sT1}, s{sT0}, 57344")
        sh = 6 if 'pf64' in EXP else 7
        a(f"v_lshlrev_b32 v4, {sh}, v0")
        a(f"v_add_u32 v5, s{sT1}, v4")
        n = 57344 >> (sh + 6)
        for i in range(0):
            a("global_load_dword v6, v5, s[6:7]")
            if i < n - 1: a(f"v_add_u32 v5, {64 << sh}, v5")
        a(f"s_lshl_b32 s{sT1}, s{sT0}, 14")
        a(f"v_add_u32 v5, s{sT1}, v4")
        n = 16384 >> (sh + 6)
        for i in range(n):
            a("global_load_dword v6, v5, s[4:5]")
            if i < n - 1: a(f"v_add_u32 v5, {64 << sh}, v5")
        a(f"v_mov_b32 v4, {LDS_M + 2048 + 4}")
        a(f"s_mov_b32 s{sT2}, 0")
        a.label(f"{name}_wf")
        a("s_sleep 4")
        a("ds_read_b32 v5, v4")
        a(f"s_add_u32 s{sT2}, s{sT2}, 1")
        a(f"s_cmp_gt_u32 s{sT2}, 0x400000")
        a(f"s_cbranch_scc1 {name}_wf_ok")
        a("s_waitcnt lgkmcnt(0)")
        a("v_cmp_eq_u32 vcc, 0, v5")
        a("s_nop 1")
        a(f"s_cbranch_vccnz {name}_wf")
        a.label(f"{name}_wf_ok")
        a(f"v_xor_b32 v{vRow}, 0x80, v{vRow}")
        a(f"s_add_u32 s{sT1}, s{sKT}, 8192")
        a(f"buffer_load_dword v{vR+8}, v{vRow}, s[{SW}:{SW+3}], s{sKT} offen sc1")
        a(f"buffer_load_dword v{vR+10}, v{vRow}, s[{SW}:{SW+3}], s{sT1} offen sc1")
        qblock()
    a(f"s_branch {TOP}_g2")
```

```python
import math, os
from asmlib import *
from layout import *
import k5 as k2
EXP = os.environ.get('EXP', '')

LDS_KV = 94208
LDS_GB = 0
LDS_PROG = k2.LDS_M + 2048
RED_STRIDE = 272
RED_PART = 128 * RED_STRIDE
D = 6

SX, SW, sWAVE = k2.SX, k2.SW, k2.sWAVE
SWC, SKV, SB2, SO = 28, 32, 40, 44
sMT, sNT, sAMT, sAH = 48, 49, 50, 51
sT0, sT1, sT2, sT3 = 57, 58, 59, 60
sIT, sKVO, sM0, sQO, sOO, sSPIN, sHS, sAW = 63, 64, 65, 66, 67, 68, 69, 70
sMODE, sRDY, sDONE, sRET = 71, 52, 53, 74
MF = "v_mfma_f32_32x32x16_bf16"

def srd(a, base, ptr, size):
    a(f"s_mov_b32 s{base}, s{ptr}")
    a(f"s_mov_b32 s{base+1}, s{ptr+1}")
    a(f"s_mov_b32 s{base+2}, {size}")
    a(f"s_mov_b32 s{base+3}, 0x20000")

def common(a):
    a(f"s_and_b32 s{sT0}, s2, 7")
    a(f"s_lshr_b32 s{sT1}, s2, 3")
    a(f"s_and_b32 s{sMT}, s{sT0}, 3")
    a(f"s_lshl_b32 s{sMT}, s{sMT}, 2")
    a(f"s_and_b32 s{sT2}, s{sT1}, 3")
    a(f"s_add_u32 s{sMT}, s{sMT}, s{sT2}")
    a(f"s_lshr_b32 s{sNT}, s{sT0}, 2")
    a(f"s_lshl_b32 s{sNT}, s{sNT}, 3")
    a(f"s_lshr_b32 s{sT2}, s{sT1}, 2")
    a(f"s_add_u32 s{sNT}, s{sNT}, s{sT2}")
    srd(a, SB2, 96, 2048)
    srd(a, SO, 98, 4194304)

def phase2(a, name, ST):
    gen_att(a, name, ST)
    a(f"s_branch {name}_final")
    a.label(f"{name}_g2")
    gen_gemm(a, name, ST)
    a.label(f"{name}_final")
    gen_final(a, name, ST)

def gen_att(a, name, ST):
    NQ = 2
    vL16 = 1
    vPA, vPR, vPV, vPG = 2, 3, 4, 5
    vIDX = 6
    vT0, vT1 = 8, 9
    SEL = 12
    F = [16, 32]
    P = 48
    S = [64, 80]
    Qf = [96, 104]
    LA = [112, 116]
    C = [128, 144]
    O = [160, 176]
    vKA = 7
    def setup_kv():
        a(f"s_sub_u32 s{sAW}, s{sWAVE}, 4")
        a(f"s_add_u32 s{SKV}, s22, {KV_OFF}")
        a(f"s_addc_u32 s{SKV+1}, s23, 0")
        a(f"s_mov_b32 s{SKV+2}, {KV_SIZE}")
        a(f"s_mov_b32 s{SKV+3}, 0x20000")
        a(f"v_lshlrev_b32 v{vL16}, 4, v0")
        a(f"s_lshl_b32 s{sM0}, s{sAW}, 12")
        a(f"s_lshr_b32 s{sKVO}, s2, 3")
        a(f"s_and_b32 s{sKVO}, s{sKVO}, 15")
        a(f"s_lshl_b32 s{sKVO}, s{sKVO}, 14")
        a(f"s_add_u32 s{sKVO}, s{sKVO}, s{sM0}")
    def dma(slot):
        o = [f"s_add_u32 m0, s{sM0}, {LDS_KV + ((slot + 2) % 4)*16384}"]
        for i in range(4):
            o.append(f"buffer_load_dwordx4 v{vL16}, s[{SKV}:{SKV+3}], s{sKVO} offen offset:{i*1024} lds")
        o.append(f"s_add_u32 s{sKVO}, s{sKVO}, 16384")
        o.append(f"s_and_b32 s{sKVO}, s{sKVO}, {KV_SIZE-1}")
        return o
    def dma_now(sl):
        dm = dma(sl)
        a(dm[0]); a("s_nop 0")
        for ln in dm[1:]: a(ln)
    a.label(f"{name}_att_early")
    setup_kv()
    dma_now(0); dma_now(1)
    if 'pfw' in EXP:
        a(f"s_mul_i32 s{sT0}, s{k2.sMT}, 28")
        a(f"s_add_u32 s{sT0}, s{sT0}, s{k2.sCW}")
        a(f"s_lshl_b32 s{sT0}, s{sT0}, 2")
        a(f"s_add_u32 s{sT0}, s{sT0}, s{sAW}")
        a(f"s_lshl_b32 s{sT0}, s{sT0}, 13")
        a(f"v_lshlrev_b32 v200, 7, v0")
        a(f"v_add_u32 v200, s{sT0}, v200")
        a(f"global_load_dword v201, v200, s[6:7]")
    a(f"s_branch {name}_att_early_ret")
    a.label(f"{name}_att")
    ST.mark(a, 2)
    a("s_setprio 2")
    a(f"s_cmp_eq_u32 s{k2.sTYPE}, 0")
    a(f"s_cbranch_scc1 {name}_att_kv")
    setup_kv()
    a(f"s_mov_b32 s{sSPIN}, 0")
    a(f"v_mov_b32 v80, {LDS_PROG + 4}")
    a.label(f"{name}_pkv")
    a(f"s_add_u32 s{sSPIN}, s{sSPIN}, 1")
    a(f"s_cmp_gt_u32 s{sSPIN}, 0x100000")
    a(f"s_cbranch_scc1 {name}_pkv_ok")
    a(f"s_cmp_eq_u32 s{sAW}, 0")
    a(f"s_cbranch_scc0 {name}_pkv_f")
    a("s_sleep 32")
    a(f"buffer_load_dword v82, v81, s[{k2.SD}:{k2.SD+3}], 0 offen sc1")
    a("s_waitcnt vmcnt(0)")
    a(f"v_and_b32 v82, v84, v82")
    a(f"v_cmp_ne_u32 vcc, v84, v82")
    a(f"v_mov_b32 v82, 1")
    a(f"s_cbranch_vccnz {name}_pkv")
    a(f"ds_write_b32 v80, v82")
    a(f"s_branch {name}_pkv_ok")
    a.label(f"{name}_pkv_f")
    a("s_sleep 4")
    a(f"ds_read_b32 v82, v80")
    a("s_waitcnt lgkmcnt(0)")
    a(f"v_cmp_eq_u32 vcc, 0, v82")
    a("s_nop 1")
    a(f"s_cbranch_vccnz {name}_pkv")
    a.label(f"{name}_pkv_ok")
    dma_now(0); dma_now(1)
    if 'pfw' in EXP: a(f"buffer_load_dword v201, v{vL16}, s[{SKV}:{SKV+3}], 0 offen")
    a.label(f"{name}_att_kv")
    dma_now(2)
    a(f"s_lshr_b32 s{sT0}, s{sAW}, 1")
    a(f"s_lshl_b32 s{sAMT}, s{k2.sMT}, 1")
    a(f"s_add_u32 s{sAMT}, s{sAMT}, s{sT0}")
    a(f"s_mov_b32 s{sAH}, s{k2.sCW}")
    a(f"s_mul_i32 s{sOO}, s{sAMT}, {A2_MT}")
    a(f"s_lshl_b32 s{sT0}, s{sAH}, 13")
    a(f"s_add_u32 s{sOO}, s{sOO}, s{sT0}")
    a(f"s_and_b32 s{sT0}, s{sAW}, 1")
    a(f"s_lshl_b32 s{sT0}, s{sT0}, 11")
    a(f"s_add_u32 s{sOO}, s{sOO}, s{sT0}")
    common(a)
    a(f"v_add_u32 v{vKA}, {LDS_KV}, v{vL16}")
    a(f"s_lshl_b32 s{sT0}, s{sAW}, 7")
    a(f"s_add_u32 s{sT0}, s{sT0}, {LDS_PROG}")
    a(f"v_mov_b32 v{vPA}, s{sT0}")
    a(f"v_and_b32 v{vPR}, 3, v0")
    a(f"v_lshlrev_b32 v{vPR}, 7, v{vPR}")
    a(f"v_add_u32 v{vPR}, {LDS_PROG}, v{vPR}")
    a(f"v_mov_b32 v{vT0}, 0x3f803f80")
    a(f"v_and_b32 v{vT1}, 4, v0")
    a(f"v_cmp_eq_u32 vcc, 0, v{vT1}")
    a("s_nop 1")
    a(f"v_cndmask_b32 v{SEL}, 0, v{vT0}, vcc")
    a(f"v_cndmask_b32 v{SEL+1}, 0, v{vT0}, vcc")
    a(f"v_cndmask_b32 v{SEL+2}, v{vT0}, 0, vcc")
    a(f"v_cndmask_b32 v{SEL+3}, v{vT0}, 0, vcc")
    a(f"v_mov_b32 v{vT0}, 0x4444")
    a(f"v_mov_b32 v{vIDX}, 0xeeee")
    a(f"v_and_b32 v{vT1}, 1, v0")
    a(f"v_cmp_eq_u32 vcc, 0, v{vT1}")
    a("s_nop 1")
    a(f"v_cndmask_b32 v{vIDX}, v{vIDX}, v{vT0}, vcc")
    for r in range(4): a(f"v_mov_b32 v{F[1]+12+r}, 0")
    for r in range(8): a(f"v_mov_b32 v{P+r}, 0")
    for qi in range(NQ):
        for r in range(16): a(f"v_mov_b32 v{O[qi]+r}, 0")
        for r in range(4): a(f"v_mov_b32 v{LA[qi]+r}, 0")
    vGO = 10
    a(f"v_mov_b32 v{vGO}, {LDS_PROG + 4}")
    ST.mark(a, 3)
    a(f"s_waitcnt vmcnt({5 if 'pfw' in EXP else 4})")
    a(f"v_mov_b32 v{vPV}, 1")
    a(f"ds_write_b32 v{vPA}, v{vPV}")
    def spin(lb, ret):
        a(f"s_mov_b32 s{sSPIN}, 0")
        a.label(lb + "_l")
        a(f"ds_read_b32 v{vPG}, v{vPR}")
        a(f"s_add_u32 s{sSPIN}, s{sSPIN}, 1")
        a(f"s_cmp_gt_u32 s{sSPIN}, 0x400000")
        a(f"s_cbranch_scc1 {ret}")
        a("s_waitcnt lgkmcnt(0)")
        a(f"v_cmp_gt_u32 vcc, v{vPV}, v{vPG}")
        a("s_nop 1")
        a(f"s_cbranch_vccnz {lb}_l")
    spin(f"{name}_a0", f"{name}_a0_ret")
    a.label(f"{name}_a0_ret")
    def rd(tile, fr):
        return f"ds_read_b128 {v(F[tile%2]+4*fr,4)}, v{vKA} offset:{((tile + 8) % 16)*4096 + fr*1024}"
    for t, fr in ((0, 0), (0, 1), (0, 2), (0, 3), (1, 0), (1, 1), (1, 2)): a(rd(t, fr))
    a(f"s_mov_b32 s{sSPIN}, 0")
    a.label(f"{name}_pq")
    a(f"ds_read_b32 v{vT0}, v{vPA} offset:16")
    a(f"s_add_u32 s{sSPIN}, s{sSPIN}, 1")
    a(f"s_cmp_gt_u32 s{sSPIN}, 0x400000")
    a(f"s_cbranch_scc1 {name}_pq_ok")
    a("s_waitcnt lgkmcnt(0)")
    a(f"v_cmp_eq_u32 vcc, 0, v{vT0}")
    a("s_nop 1")
    a(f"s_cbranch_vccnz {name}_pq")
    a.label(f"{name}_pq_ok")
    a(f"s_add_u32 s{sT0}, s{sM0}, {k2.LDS_QX}")
    a(f"v_add_u32 v{vT0}, s{sT0}, v{vL16}")
    for qi in range(NQ):
        for f in range(2):
            a(f"ds_read_b128 {v(Qf[qi]+4*f,4)}, v{vT0} offset:{qi*2048 + f*1024}")
    a("s_waitcnt lgkmcnt(0)")
    ST.mark(a, 4)
    for qi in range(NQ):
        a(f"{MF} {v(S[qi],16)}, {v(F[0],4)}, {v(Qf[qi],4)}, 0")
        a(f"{MF} {v(S[qi],16)}, {v(F[0]+4,4)}, {v(Qf[qi]+4,4)}, {v(S[qi],16)}")
    a("s_nop 15")
    def rowmax(src, dst):
        a(f"v_max3_f32 v{dst}, v{src}, v{src+1}, v{src+2}")
        for i in range(3, 15, 2):
            a(f"v_max3_f32 v{dst}, v{dst}, v{src+i}, v{src+i+1}")
        a(f"v_max_f32 v{dst}, v{dst}, v{src+15}")
    def xhalf_max(r, t):
        a(f"v_mov_b32 v{t}, v{r}")
        a("s_nop 1")
        a(f"v_permlane32_swap_b32 v{r}, v{t}")
        a("s_nop 1")
        a(f"v_max_f32 v{r}, v{r}, v{t}")
    for qi in range(NQ):
        rowmax(S[qi], vT0)
        xhalf_max(vT0, vT1)
        for r in range(16): a(f"v_sub_f32 v{C[qi]+r}, 0, v{vT0}")
    for r in range(16): a(f"v_add_f32 v{S[0]+r}, v{S[0]+r}, v{C[0]}")
    a(f"s_mov_b32 s{sIT}, 4")

    SCHED = os.environ.get("SCHED", "e0 e1 D e2 e3 e4 S e5 A e6 e7 c0 c1 B c2 c3 e8 e9 C e10 e11 c4 e12 e13 c5 e14 e15 c6 c7").split()
    slow = []
    def unit(out, q, u):
        t, qi = u // 2, u % 2
        tp, qp = (u - 1) // 2, (u - 1) % 2
        tn, qn = (u + 1) // 2, (u + 1) % 2
        cur, nxt = S[u % 2], S[(u + 1) % 2]
        ph, c = u % 8, u // 8
        post = {k: [] for k in "DSABC"}
        pre = {k: [] for k in "DSABC"}
        def lds(slot, ins, tag): post[slot].append((ins, tag))
        if qi == 0:
            lds("D", rd(t + 1, 3), ("V1", (t + 1) % 2))
            lds("A", rd(t + 2, 0), ("K0", t % 2))
            lds("B", rd(t + 2, 1), ("K1", t % 2))
        else:
            lds("C", rd(t + 2, 2), ("V0", t % 2))
        if ph == 2: lds("S", f"ds_read_b32 v{vPG}, v{vPR}", "PG")
        if ph == 7: lds("D", f"ds_write_b32 v{vPA}, v{vPV}", "PW")
        if ph == 6: pre["C"].append(f"v_add_u32 v{vPV}, 1, v{vPV}")
        dm = dma((c + 3) % 4)
        if 'nodma' in EXP: dm = [x if not x.startswith("buffer") else "s_nop 0" for x in dm]
        if ph == 3:
            post["S"].append((dm[1], None)); post["A"].append((dm[2], None)); post["B"].append((dm[3], None))
        if ph == 4:
            post["S"].append((dm[4], None)); post["C"].append((dm[5], None)); post["C"].append((dm[6], None))
        for tok in SCHED:
            if tok[0] == "e":
                i = int(tok[1:]); out.append(f"v_exp_f32 v{cur+i}, v{cur+i}")
            elif tok[0] == "c":
                i = int(tok[1:]); out.append(f"v_cvt_pk_bf16_f32 v{P+i}, v{cur+2*i}, v{cur+2*i+1}")
            else:
                out += pre[tok]
                if tok == "D":
                    if qi == 1:
                        tags = [("V1", t % 2), ("K0", (t + 1) % 2), ("K1", (t + 1) % 2), ("V0", (t + 1) % 2)] + (["PG"] if ph == 3 else [])
                        n = q.need(tags)
                        w = f"lgkmcnt({n})" if n is not None else ""
                        if ph == 7: w = "vmcnt(4) " + w
                        if w: out.append(f"s_waitcnt {w}")
                    out.append(f"{MF} {v(O[qp],16)}, {v(F[tp%2]+12,4)}, {v(P+4,4)}, {v(O[qp],16)}")
                    if ph == 3:
                        lb = f"{name}_slow{c}"
                        out.append(dm[0])
                        out.append(f"v_cmp_gt_u32 vcc, v{vPV}, v{vPG}")
                        pre["S"] += [f"s_cbranch_vccnz {lb}" if 'nochk' not in EXP else "s_nop 0", f"{lb}_ret:"]
                        if lb not in slow: slow.append(lb)
                elif tok == "S":
                    out.append(f"v_smfmac_f32_16x16x64_bf16 {v(LA[qp],4)}, {v(SEL,4)}, {v(P,8)}, v{vIDX}")
                elif tok == "A":
                    out.append(f"{MF} {v(nxt,16)}, {v(F[tn%2],4)}, {v(Qf[qn],4)}, {v(C[qn],16)}")
                elif tok == "B":
                    out.append(f"{MF} {v(nxt,16)}, {v(F[tn%2]+4,4)}, {v(Qf[qn]+4,4)}, {v(nxt,16)}")
                elif tok == "C":
                    out.append(f"{MF} {v(O[qi],16)}, {v(F[t%2]+8,4)}, {v(P,4)}, {v(O[qi],16)}")
                for ins, tag in post[tok]:
                    out.append(ins)
                    if tag: q.issue(tag)
    q = Q("lgkm", 15)
    dummy = []
    for u in range(32): unit(dummy, q, u)
    body = []
    for u in range(32): unit(body, q, u)
    a(".p2align 6")
    a.label(f"{name}_aloop")
    for ln in body: a(ln)
    a(f"s_sub_u32 s{sIT}, s{sIT}, 1")
    if 'stq' in EXP and ST.on:
        for it, idx in ((3, 1), (2, 2), (1, 3)):
            a(f"s_cmp_lg_u32 s{sIT}, {it}")
            a(f"s_cbranch_scc1 {name}_stq{it}")
            ST.mark(a, idx)
            a.label(f"{name}_stq{it}")
    a(f"s_cmp_lg_u32 s{sIT}, 0")
    a(f"s_cbranch_scc1 {name}_aloop")
    a(f"{MF} {v(O[1],16)}, {v(F[1]+12,4)}, {v(P+4,4)}, {v(O[1],16)}")
    a(f"v_smfmac_f32_16x16x64_bf16 {v(LA[1],4)}, {v(SEL,4)}, {v(P,8)}, v{vIDX}")
    a(f"v_mov_b32 v{vPG}, {f32(2.0**40)}")
    for qi in range(NQ):
        if qi == 1: a("s_nop 3")
        a(f"v_add_f32 v{LA[qi]}, v{LA[qi]}, v{LA[qi]+1}")
        a(f"v_cmp_nle_f32 vcc, v{LA[qi]}, v{vPG}")
        a("s_nop 1")
        a(f"s_cbranch_vccnz {name}_fb{qi}")
        a.label(f"{name}_ok{qi}")
        a(f"v_rcp_f32 v{vT0}, v{LA[qi]}")
        a("s_nop 0")
        for r in range(16): a(f"v_mul_f32 v{O[qi]+r}, v{O[qi]+r}, v{vT0}")
        for i in range(8): a(f"v_cvt_pk_bf16_f32 v{S[1]+8*qi+i}, v{O[qi]+2*i}, v{O[qi]+2*i+1}")
        for f in range(2):
            a(f"s_add_u32 s{sT1}, s{sOO}, {qi*1024 + f*4096}")
            a(f"buffer_store_dwordx4 {v(S[1]+8*qi+4*f,4)}, v{vL16}, s[{SW}:{SW+3}], s{sT1} offen sc1")
    a(f"s_mul_i32 s{sT0}, s{sAMT}, {FLS}")
    a(f"s_lshr_b32 s{sT1}, s{sAH}, 1")
    a(f"s_lshl_b32 s{sT1}, s{sT1}, 2")
    a(f"s_add_u32 s{sT0}, s{sT0}, s{sT1}")
    a(f"s_add_u32 s{sT0}, s{sT0}, {FL_OFF + FL_O*FLS}")
    a(f"v_mov_b32 v{vT0}, 1")
    a(f"v_lshlrev_b32 v{vT1}, 24, v0")
    a("s_waitcnt vmcnt(0)")
    a(f"buffer_atomic_add v{vT0}, v{vT1}, s[{SW}:{SW+3}], s{sT0} offen sc1")
    ST.mark(a, 5)
    a(f"s_cmp_eq_u32 s{sAW}, 0")
    a(f"s_cbranch_scc0 {name}_attdone")
    a(f"s_mul_i32 s{sT3}, s{sMT}, {FLS}")
    a(f"s_add_u32 s{sT3}, s{sT3}, {FL_OFF + FL_O*FLS}")
    a(f"v_lshrrev_b32 v{vT0}, 4, v0")
    a(f"v_lshlrev_b32 v{vT1}, 2, v0")
    a(f"v_lshl_add_u32 v{vT1}, v{vT0}, 24, v{vT1}")
    a(f"s_mov_b32 s{sSPIN}, 0")
    a.label(f"{name}_opoll")
    a(f"buffer_load_dword v{vT0}, v{vT1}, s[{SW}:{SW+3}], s{sT3} offen sc1")
    a(f"s_add_u32 s{sSPIN}, s{sSPIN}, 1")
    a("s_waitcnt vmcnt(0)")
    a(f"v_cmp_le_u32 vcc, 4, v{vT0}")
    a("s_nop 1")
    a(f"s_or_b32 s{sT0}, vcc_lo, 0x80000000")
    a(f"v_mov_b32 v{vT0}, s{sT0}")
    a(f"ds_or_b32 v{vGO}, v{vT0} offset:8")
    a(f"s_cmp_eq_u32 s{sT0}, 0x8000ffff")
    a(f"s_cbranch_scc1 {name}_attdone")
    a(f"s_cmp_gt_u32 s{sSPIN}, 0x100000")
    a(f"s_cbranch_scc1 {name}_attdone")
    a(f"s_sleep {os.environ.get('SLO', '2')}")
    a(f"s_branch {name}_opoll")
    for lb in slow:
        a.label(lb)
        spin(lb, lb + "_ret")
        a(f"s_branch {lb}_ret")
    for qi in range(NQ):
        a.label(f"{name}_fb{qi}")
        gen_fallback(a, name, qi, Qf[qi], C[qi], O[qi], LA[qi], P, SEL, vIDX, vL16, vT0, vT1, rowmax, xhalf_max)
        a(f"s_branch {name}_ok{qi}")
    a.label(f"{name}_attdone")

def gen_fallback(a, name, qi, Qr, C, O, LA, P, SEL, vIDX, vL16, vT0, vT1, rowmax, xhalf_max):
    F = 192
    vM = 11
    S0 = 208
    PP = 224
    a("s_nop 15")
    a(f"v_mov_b32 v{vM}, 0xff800000")
    a(f"s_mov_b32 s{sT2}, 0")
    a.label(f"{name}_fb1_{qi}")
    for f in range(2):
        a(f"buffer_load_dwordx4 {v(F+4*f,4)}, v{vL16}, s[{SKV}:{SKV+3}], s{sT2} offen offset:{f*1024}")
    a("s_waitcnt vmcnt(0)")
    a(f"{MF} {v(S0,16)}, {v(F,4)}, {v(Qr,4)}, 0")
    a(f"{MF} {v(S0,16)}, {v(F+4,4)}, {v(Qr+4,4)}, {v(S0,16)}")
    a("s_nop 15")
    rowmax(S0, vT0)
    a(f"v_max_f32 v{vM}, v{vM}, v{vT0}")
    a(f"s_add_u32 s{sT2}, s{sT2}, 4096")
    a(f"s_cmp_lt_u32 s{sT2}, {KV_SIZE}")
    a(f"s_cbranch_scc1 {name}_fb1_{qi}")
    xhalf_max(vM, vT1)
    for r in range(16): a(f"v_sub_f32 v{C+r}, 0, v{vM}")
    for r in range(16): a(f"v_mov_b32 v{O+r}, 0")
    for r in range(4): a(f"v_mov_b32 v{LA+r}, 0")
    a(f"s_mov_b32 s{sT2}, 0")
    a.label(f"{name}_fb2_{qi}")
    for f in range(4):
        a(f"buffer_load_dwordx4 {v(F+4*f,4)}, v{vL16}, s[{SKV}:{SKV+3}], s{sT2} offen offset:{f*1024}")
    a("s_waitcnt vmcnt(0)")
    a(f"{MF} {v(S0,16)}, {v(F,4)}, {v(Qr,4)}, {v(C,16)}")
    a(f"{MF} {v(S0,16)}, {v(F+4,4)}, {v(Qr+4,4)}, {v(S0,16)}")
    a("s_nop 15")
    for r in range(16): a(f"v_exp_f32 v{S0+r}, v{S0+r}")
    a("s_nop 0")
    for i in range(8): a(f"v_cvt_pk_bf16_f32 v{PP+i}, v{S0+2*i}, v{S0+2*i+1}")
    a("s_nop 1")
    a(f"{MF} {v(O,16)}, {v(F+8,4)}, {v(PP,4)}, {v(O,16)}")
    a(f"{MF} {v(O,16)}, {v(F+12,4)}, {v(PP+4,4)}, {v(O,16)}")
    a(f"v_smfmac_f32_16x16x64_bf16 {v(LA,4)}, {v(SEL,4)}, {v(PP,8)}, v{vIDX}")
    a("s_nop 7")
    a(f"s_add_u32 s{sT2}, s{sT2}, 4096")
    a(f"s_cmp_lt_u32 s{sT2}, {KV_SIZE}")
    a(f"s_cbranch_scc1 {name}_fb2_{qi}")
    a("s_nop 15")
    a(f"v_add_f32 v{LA}, v{LA}, v{LA+1}")

GACC = 128
def gacc(nb, rb): return GACC + (rb * 2 + nb) * 16

def gen_gemm(a, name, ST):
    vL16, vB0, vB1, vR0, vR1, vFO, vFT = 1, 4, 5, 6, 7, 8, 9
    t0, t1, t2, t3 = 10, 11, 12, 13
    BF = [16, 24]
    AF = [32 + 16 * i for i in range(D)]
    GW = sWAVE
    sAB = sQO
    common(a)
    srd(a, SWC, 6, 7340032)
    a(f"v_lshlrev_b32 v{vL16}, 4, v0")
    a(f"v_lshrrev_b32 v{t0}, 3, v0")
    a(f"v_lshlrev_b32 v{t0}, 11, v{t0}")
    a(f"v_and_b32 v{t1}, 7, v0")
    a(f"v_bfe_u32 v{t2}, v0, 4, 1")
    a(f"v_lshlrev_b32 v{t2}, 2, v{t2}")
    a(f"v_xor_b32 v{t1}, v{t1}, v{t2}")
    a(f"v_lshl_add_u32 v{t0}, v{t1}, 4, v{t0}")
    a(f"s_lshl_b32 s{sT0}, s{sNT}, 7")
    a(f"s_lshl_b32 s{sT1}, s{GW}, 15")
    a(f"s_add_u32 s{sT0}, s{sT0}, s{sT1}")
    a(f"v_add_u32 v{vB0}, s{sT0}, v{t0}")
    a(f"v_add_u32 v{vB1}, {16384 - 1024}, v{vB0}")
    a(f"s_mul_i32 s{sM0}, s{GW}, {D*2048}")
    a(f"s_add_u32 s{sM0}, s{sM0}, {LDS_GB}")
    a(f"s_mul_i32 s{sOO}, s{sMT}, {A2_MT}")
    a(f"s_lshl_b32 s{sT0}, s{GW}, 12")
    a(f"s_add_u32 s{sOO}, s{sOO}, s{sT0}")
    a(f"s_add_u32 s{sAB}, s{sOO}, {64*4096}")
    a(f"s_mul_i32 s{sHS}, s{sMT}, 7")
    a(f"s_lshr_b32 s{sHS}, s{sHS}, 1")
    if 'g2fix' in EXP: a(f"s_mov_b32 s{sHS}, 0")
    a(f"v_bfe_u32 v{t0}, v0, 4, 1")
    a(f"v_and_b32 v{t2}, 3, v0")
    a(f"v_lshlrev_b32 v{t0}, 5, v{t0}")
    a(f"v_lshl_add_u32 v{t0}, v{t2}, 3, v{t0}")
    a(f"v_bfe_u32 v{t2}, v0, 2, 2")
    a(f"v_lshrrev_b32 v{t1}, 5, v0")
    a(f"v_lshl_add_u32 v{t1}, v{t1}, 2, v{t2}")
    a(f"v_bfe_u32 v{t3}, v0, 3, 1")
    a(f"v_lshlrev_b32 v{t3}, 6, v{t3}")
    a(f"v_xor_b32 v{t3}, v{t3}, v{t0}")
    a(f"v_lshl_add_u32 v{t3}, v{t1}, 7, v{t3}")
    a(f"v_add_u32 v{vR0}, s{sM0}, v{t3}")
    a(f"v_xor_b32 v{vR1}, 64, v{vR0}")
    a(f"v_lshrrev_b32 v{t0}, 2, v0")
    a(f"v_mul_u32_u24 v{vFO}, {FLS}, v0")
    a(f"v_lshl_add_u32 v{vFO}, v{t0}, 24, v{vFO}")
    a(f"v_mov_b32 v{vFT}, 0")
    a(f"v_cmp_gt_u32 vcc, 4, v0")
    a("s_nop 1")
    a(f"v_cndmask_b32 v{vFT}, v{vFT}, 14, vcc")
    for r in range(GACC, 256): a(f"v_mov_b32 v{r}, 0")
    vGO = 14
    a(f"v_mov_b32 v{vGO}, {LDS_PROG + 8}")
    def poll(lbl, line, stage):
        a(f"s_mul_i32 s{sT3}, s{sMT}, {4*FLS}")
        a(f"s_add_u32 s{sT3}, s{sT3}, {FL_OFF + line*FLS}")
        a(f"s_mov_b32 s{sSPIN}, 0")
        a.label(lbl)
        a(f"s_add_u32 s{sSPIN}, s{sSPIN}, 1")
        a(f"s_cmp_gt_u32 s{sSPIN}, 0x100000")
        a(f"s_cbranch_scc1 {lbl}_ok")
        a(f"s_cmp_eq_u32 s{GW}, 0")
        a(f"s_cbranch_scc0 {lbl}_f")
        a(f"buffer_load_dword v{t0}, v{vFO}, s[{SW}:{SW+3}], s{sT3} offen sc1")
        a("s_waitcnt vmcnt(0)")
        a(f"v_cmp_gt_u32 vcc, v{vFT}, v{t0}")
        a(f"v_mov_b32 v{t0}, {stage}")
        a(f"s_cbranch_vccz {lbl}_set")
        a(f"s_sleep {os.environ.get('SLG', '8')}")
        a(f"s_branch {lbl}")
        a.label(f"{lbl}_f")
        a(f"ds_read_b32 v{t0}, v{vGO}")
        a("s_waitcnt lgkmcnt(0)")
        a(f"v_readfirstlane_b32 s{sT0}, v{t0}")
        a(f"s_cmp_ge_u32 s{sT0}, {stage}")
        a(f"s_cbranch_scc1 {lbl}_ok")
        a("s_sleep 2")
        a(f"s_branch {lbl}")
        a.label(f"{lbl}_set")
        a(f"ds_write_b32 v{vGO}, v{t0}")
        a.label(f"{lbl}_ok")
    a(f"s_mov_b32 s{sSPIN}, 0")
    a.label(f"{name}_gz")
    a(f"v_mov_b32 v{t1}, {LDS_PROG}")
    a(f"ds_read_b32 v{t0}, v{t1}")
    a(f"s_add_u32 s{sSPIN}, s{sSPIN}, 1")
    a(f"s_cmp_gt_u32 s{sSPIN}, 0x400000")
    a(f"s_cbranch_scc1 {name}_gz_ok")
    a("s_waitcnt lgkmcnt(0)")
    a(f"v_cmp_eq_u32 vcc, 0, v{t0}")
    a("s_nop 1")
    a(f"s_cbranch_vccz {name}_gz_ok")
    a("s_sleep 4")
    a(f"s_branch {name}_gz")
    a.label(f"{name}_gz_ok")
    poll(f"{name}_ph", FL_H, 1)
    a(f"s_setprio {os.environ.get('GP', '0')}")
    ST.mark(a, 4)
    def ldB(i, sel=False):
        if 'gnold' in EXP: return []
        pre = []
        if sel:
            lb = a.newlabel("nosel")
            pre = [f"s_cmp_eq_u32 s{sMODE}, 0", f"s_cbranch_scc1 {lb}", f"s_call_b64 s[{sRET}:{sRET+1}], {name}_gsel", f"{lb}:"]
        return pre + [f"s_add_u32 m0, s{sM0}, {i*2048}",
                f"s_lshl_b32 s{sT1}, s{sHS}, 17",
                f"buffer_load_dwordx4 v{vB0}, s[{SWC}:{SWC+3}], s{sT1} offen lds",
                f"buffer_load_dwordx4 v{vB1}, s[{SWC}:{SWC+3}], s{sT1} offen offset:1024 lds",
                f"s_lshl_b32 s{sT2}, s{sHS}, 14",
                f"s_add_u32 s{sT2}, s{sT2}, s{sAB}",
                f"s_add_u32 s{sHS}, s{sHS}, 1",
                f"s_cmp_eq_u32 s{sHS}, 56",
                f"s_cselect_b32 s{sHS}, 0, s{sHS}"]
    def ldA(i, rb):
        if 'gnold' in EXP: return "s_nop 0"
        return f"buffer_load_dwordx4 {v(AF[i]+4*rb,4)}, v{vL16}, s[{SW}:{SW+3}], s{sT2} offen offset:{rb*1024} sc1"
    for i in range(D):
        for ln in ldB(i): a(ln)
        for rb in range(4): a(ldA(i, rb))
    def rdB(i):
        b = BF[i % 2]
        return [f"ds_read_b64_tr_b16 {v(b+4*nb+2*j,2)}, v{vR0+nb} offset:{(i%D)*2048 + j*1024}" for nb in range(2) for j in range(2)]
    a(f"s_waitcnt vmcnt({6*D - 2})")
    for ln in rdB(0): a(ln)
    def step(i, load):
        n = 4 + 6 * (D - 2) if load else max(0, 4 + 6 * (D - 2 - i))
        if not load and i == D - 1: n = 0
        a(f"s_waitcnt vmcnt({n}) lgkmcnt(0)")
        rds = rdB(i + 1) if (load or i < D - 1) else []
        lb = ldB(i, True) if load else []
        place = {k: [] for k in range(8)}
        lA = [ldA(i, rb) for rb in range(4)] if load else []
        mode = os.environ.get("GM", "332")
        if mode == "il":
            place[0] += rds + lb
            for rb in range(4): place[2 * rb + 1] += lA[rb:rb + 1]
        elif mode == "44":
            for k in range(len(rds)): place[k].append(rds[k])
            place[3] += lb + lA[:1]
            place[7] += lA[1:]
        elif mode == "44b":
            place[3] += rds + lb + lA[:2]
            place[7] += lA[2:]
        elif mode == "332":
            for k in range(len(rds)): place[k].append(rds[k])
            place[2] += lb
            place[5] += lA[:3]
            place[7] += lA[3:]
        k = 0
        for rb in range(4):
            for nb in range(2):
                c = v(gacc(nb, rb), 16)
                a(f"{MF} {c}, {v(BF[i%2]+4*nb,4)}, {v(AF[i]+4*rb,4)}, {c}")
                for ln in place[k]: a(ln)
                k += 1
    NIT = 72 // D
    sw_it, sw_pos = (56 - D) // D, (56 - D) % D
    a(f"s_mov_b32 s{sIT}, 0")
    a(f"s_mov_b32 s{sMODE}, 0")
    a(f"s_mov_b32 s{sRDY}, 0")
    a(f"s_mov_b32 s{sDONE}, 0")
    a(".p2align 6")
    a.label(f"{name}_gloop")
    for i in range(D):
        if i == sw_pos:
            a(f"s_cmp_eq_u32 s{sIT}, {sw_it}")
            a(f"s_cbranch_scc1 {name}_gsw")
            a.label(f"{name}_gsw_ret")
        step(i, True)
    a(f"s_add_u32 s{sIT}, s{sIT}, 1")
    if 'stq' in EXP and ST.on:
        for it, idx in ((1, 1), (4, 2)):
            a(f"s_cmp_lg_u32 s{sIT}, {it}")
            a(f"s_cbranch_scc1 {name}_gstq{it}")
            ST.mark(a, idx)
            a.label(f"{name}_gstq{it}")
    a(f"s_cmp_lt_u32 s{sIT}, {NIT - 1}")
    a(f"s_cbranch_scc1 {name}_gloop")
    for i in range(D): step(i, False)
    a(f"s_branch {name}_final")
    a.label(f"{name}_gsw")
    if 'stsw' in EXP: ST.mark(a, 3)
    a(f"s_mov_b32 s{SWC}, s4")
    a(f"s_mov_b32 s{SWC+1}, s5")
    a(f"s_mov_b32 s{SWC+2}, 2097152")
    a(f"s_mov_b32 s{sHS}, 0")
    a(f"s_mov_b32 s{sAB}, s{sOO}")
    a(f"s_lshl_b32 s{sT0}, s2, 2")
    a(f"s_add_u32 s{sT0}, s{sT0}, s{GW}")
    a(f"s_lshl_b32 s{sT0}, s{sT0}, 11")
    a(f"v_and_b32 v{t1}, 31, v0")
    a(f"v_lshlrev_b32 v{t1}, 6, v{t1}")
    if 'nopfo' in EXP: a(f"buffer_load_dword v{t2}, v{t1}, s[{SWC}:{SWC+3}], s{sT0} offen")
    a(f"s_mov_b32 s{sMODE}, 1")
    a(f"s_mul_i32 s{sT3}, s{sMT}, {FLS}")
    a(f"s_add_u32 s{sT3}, s{sT3}, {FL_OFF + FL_O*FLS}")
    a(f"v_lshrrev_b32 v{t0}, 4, v0")
    a(f"v_lshlrev_b32 v{vFO}, 2, v0")
    a(f"v_lshl_add_u32 v{vFO}, v{t0}, 24, v{vFO}")
    a(f"s_branch {name}_gsw_ret")
    a.label(f"{name}_gsel")
    a(f"s_mov_b32 s{sSPIN}, 0")
    a.label(f"{name}_gsel_l")
    a(f"s_andn2_b32 s{sT0}, s{sRDY}, s{sDONE}")
    a(f"s_cbranch_scc1 {name}_gsel_ok")
    a(f"s_add_u32 s{sSPIN}, s{sSPIN}, 1")
    a(f"s_cmp_gt_u32 s{sSPIN}, 0x100000")
    a(f"s_cselect_b32 s{sRDY}, 0xffff, s{sRDY}")
    a(f"s_cbranch_scc1 {name}_gsel_l")
    a(f"s_cmp_eq_u32 s{sSPIN}, 1")
    a(f"s_cbranch_scc1 {name}_gsel_fns")
    a("s_sleep 2")
    a(f"s_or_b32 s{sT0}, s{GW}, s{sT1}")
    a(f"s_cmp_eq_u32 s{sT0}, 0")
    a(f"s_cbranch_scc0 {name}_gsel_fns")
    a(f"s_sleep {os.environ.get('SLG', '8')}")
    a(f"buffer_load_dword v{t0}, v{vFO}, s[{SW}:{SW+3}], s{sT3} offen sc1")
    a("s_waitcnt vmcnt(0)")
    a(f"v_cmp_le_u32 vcc, 4, v{t0}")
    a("s_nop 1")
    a(f"v_mov_b32 v{t0}, vcc_lo")
    a(f"ds_or_b32 v{vGO}, v{t0} offset:4")
    a.label(f"{name}_gsel_fns")
    a(f"ds_read_b32 v{t0}, v{vGO} offset:4")
    a("s_waitcnt lgkmcnt(0)")
    a(f"v_readfirstlane_b32 s{sRDY}, v{t0}")
    a(f"s_lshr_b32 s{sT1}, s{sRDY}, 31")
    a(f"s_and_b32 s{sRDY}, s{sRDY}, 0xffff")
    a(f"s_branch {name}_gsel_l")
    a.label(f"{name}_gsel_ok")
    a(f"s_ff1_i32_b32 s{sHS}, s{sT0}")
    a(f"s_bitset1_b32 s{sDONE}, s{sHS}")
    if ST.on:
        a(f"s_cmp_eq_u32 s{sDONE}, 0xffff")
        a(f"s_cbranch_scc0 {name}_gsel_r")
        ST.mark(a, 5)
        a.label(f"{name}_gsel_r")
    a(f"s_setpc_b64 s[{sRET}:{sRET+1}]")

def gen_final(a, name, ST):
    ST.mark(a, 6)
    vX, vB2, vOA, vRA = 96, 104, 108, 110
    a(f"v_lshrrev_b32 v2, 3, v0")
    a(f"v_and_b32 v3, 7, v0")
    a(f"s_lshl_b32 s{sT0}, s{sMT}, 7")
    a(f"s_lshl_b32 s{sT1}, s{sWAVE}, 4")
    a(f"s_add_u32 s{sT0}, s{sT0}, s{sT1}")
    a(f"s_lshl_b32 s{sT0}, s{sT0}, 11")
    a(f"s_lshl_b32 s{sT2}, s{sNT}, 7")
    a(f"s_add_u32 s{sT0}, s{sT0}, s{sT2}")
    a(f"s_add_u32 s{sT1}, s{sT0}, 16384")
    a(f"v_lshlrev_b32 v4, 4, v3")
    a(f"v_lshl_add_u32 v{vOA}, v2, 11, v4")
    a(f"buffer_load_dwordx4 {v(vX,4)}, v{vOA}, s[{SX}:{SX+3}], s{sT0} offen")
    a(f"buffer_load_dwordx4 {v(vX+4,4)}, v{vOA}, s[{SX}:{SX+3}], s{sT1} offen")
    a(f"buffer_load_dwordx4 {v(vB2,4)}, v4, s[{SB2}:{SB2+3}], s{sT2} offen")
    a(f"v_mul_u32_u24 v{vRA}, {RED_STRIDE}, v2")
    a(f"v_lshl_add_u32 v{vRA}, v3, 5, v{vRA}")
    a(f"s_mul_i32 s{sT3}, s{sWAVE}, {16*RED_STRIDE}")
    a(f"v_add_u32 v{vRA}, s{sT3}, v{vRA}")
    a(f"v_add_u32 v{vRA+1}, {2*RED_PART}, v{vRA}")
    a("s_waitcnt vmcnt(3) lgkmcnt(0)")
    a("s_barrier")
    a(f"s_cmp_ge_u32 s{sWAVE}, 4")
    a(f"s_cbranch_scc1 {name}_fin2")
    a(f"v_and_b32 v2, 31, v0")
    a(f"v_mul_u32_u24 v2, {RED_STRIDE}, v2")
    a(f"v_lshrrev_b32 v3, 5, v0")
    a(f"v_lshl_add_u32 v2, v3, 4, v2")
    a(f"s_mul_i32 s{sT3}, s{sWAVE}, {RED_PART}")
    a(f"v_add_u32 v2, s{sT3}, v2")
    for rb in range(4):
        for nb in range(2):
            for g in range(4):
                a(f"ds_write_b128 v2, {v(gacc(nb,rb)+4*g,4)} offset:{rb*32*RED_STRIDE + nb*128 + g*32}")
    a("s_waitcnt lgkmcnt(0)")
    a.label(f"{name}_fin2")
    a("s_barrier")
    Dd = 16
    for rg in range(2):
        for p in range(4):
            for hh in range(2):
                a(f"ds_read_b128 {v(Dd + rg*32 + p*8 + hh*4, 4)}, v{vRA + p//2} offset:{(p%2)*RED_PART + rg*8*RED_STRIDE + hh*16}")
    a("s_waitcnt vmcnt(0)")
    for i in range(4):
        a(f"v_lshlrev_b32 v{80+2*i}, 16, v{vB2+i}")
        a(f"v_and_b32 v{80+2*i+1}, 0xffff0000, v{vB2+i}")
    for rg in range(2):
        for i in range(4):
            a(f"v_lshlrev_b32 v{88+2*i}, 16, v{vX+4*rg+i}")
            a(f"v_and_b32 v{88+2*i+1}, 0xffff0000, v{vX+4*rg+i}")
        for i in range(0, 8, 2):
            a(f"v_pk_add_f32 {v(88+i,2)}, {v(88+i,2)}, {v(80+i,2)}")
        a(f"s_waitcnt lgkmcnt({8 if rg == 0 else 0})")
        b = Dd + rg * 32
        for i in range(0, 8, 2):
            a(f"v_pk_add_f32 {v(b+i,2)}, {v(b+i,2)}, {v(b+8+i,2)}")
            a(f"v_pk_add_f32 {v(b+16+i,2)}, {v(b+16+i,2)}, {v(b+24+i,2)}")
        for i in range(0, 8, 2):
            a(f"v_pk_add_f32 {v(b+i,2)}, {v(b+i,2)}, {v(b+16+i,2)}")
        for i in range(0, 8, 2):
            a(f"v_pk_add_f32 {v(b+i,2)}, {v(b+i,2)}, {v(88+i,2)}")
        for i in range(4):
            a(f"v_cvt_pk_bf16_f32 v{b+8+i}, v{b+2*i}, v{b+2*i+1}")
        a(f"buffer_store_dwordx4 {v(b+8,4)}, v{vOA}, s[{SO}:{SO+3}], s{sT0 if rg == 0 else sT1} offen")
    ST.flush(a, 7, SW, sWAVE, ST_OFF)
```

```python
import sys, os
sys.path.insert(0, os.path.dirname(__file__))
from k2 import gen_k2
from k3 import gen_k3

HEADER = """; Kernarg layout for this problem (104 bytes, ptrs only, base s[0:1]):
"""

def kd(name, vgpr=256, sgpr=102):
    return f""".p2align 6
.amdhsa_kernel {name}
  .amdhsa_next_free_vgpr {vgpr}
  .amdhsa_next_free_sgpr {sgpr}
  .amdhsa_accum_offset {vgpr}
  .amdhsa_group_segment_fixed_size 0
  .amdhsa_kernarg_size 104
  .amdhsa_user_sgpr_count 2
  .amdhsa_user_sgpr_kernarg_segment_ptr 1
  .amdhsa_system_sgpr_workgroup_id_x 1
.end_amdhsa_kernel"""

def build(kernels, path):
    out = [HEADER.rstrip()]
    for name, _, grid, block, lds in kernels:
        out.append(f"; @launch kernel={name} grid=({grid},1,1) block=({block},1,1) lds={lds}")
    out.append('.amdgcn_target "amdgcn-amd-amdhsa--gfx950"\n.text\n.p2align 8\ncode_begin:')
    seen = set()
    for name, text, *_ in kernels:
        if name not in seen:
            out.append(text); seen.add(name)
    out.append('code_end:')
    out.append('.section .rodata,"a"')
    for name in dict.fromkeys(k[0] for k in kernels):
        out.append(kd(name))
    open(path, "w").write("\n".join(out) + "\n")

if __name__ == "__main__":
    cfg = sys.argv[1] if len(sys.argv) > 1 else "k2"
    path = sys.argv[2] if len(sys.argv) > 2 else "out.s"
    ks = []
    st = "stamps" in sys.argv
    NQ = int(os.environ.get("NQ", "1"))
    if cfg == "v4":
        import k5, k6
        KN = "parallel_sum__grouped_kv_mqa__mixer_channel_mlp__prompt_kernel" if "final" in sys.argv else "fused_kernel"
        ks.append((KN, k5.gen_k2(KN, stamps=st, phase2=k6.phase2), 256, 512, 163840))
    elif cfg == "v3":
        import k4
        ks.append(("fused_kernel", gen_k2("fused_kernel", stamps=st, phase2=k4.phase2), 256, 512, 163840))
    else: ks.append(("g1_kernel", gen_k2("g1_kernel", stamps=st, stflag=os.environ.get("STFLAG", "sc1")), 256, 512, 163840))
    if cfg == "v1":
        ks.append(("att_kernel", gen_k3("att_kernel", True, False, NQ, st, 1), 256, 512, 163840))
        ks.append(("g2_kernel", gen_k3("g2_kernel", False, True, NQ, st, 2), 256, 512, 163840))
    if cfg == "v2":
        ks.append(("k3_kernel", gen_k3("k3_kernel", True, True, NQ, st, 1), 256, 512, 163840))
    for i in range(int(os.environ.get("EMPTY", "0"))):
        ks.append(("nop_kernel", ".globl nop_kernel\n.p2align 8\n.type nop_kernel,@function\nnop_kernel:\n  s_endpgm", 256, 512, 0))
    build(ks, path)
```
